```python
import torch

def _softmax(x, axis=-1):
    return torch.softmax(x, dim=axis)
def _gelu(x):
    return torch.nn.functional.gelu(x, approximate="tanh")
def _silu(x):
    return torch.nn.functional.silu(x)
def _sigmoid(x):
    return torch.sigmoid(x)
def _layernorm(x, axis=-1, eps=1e-5):
    m = x.mean(dim=axis, keepdim=True)
    v = x.var(dim=axis, keepdim=True, unbiased=False)
    return (x - m) / torch.sqrt(v + eps)
def _scatter_add(tgt, idx, src, axis=0):
    return tgt.clone().index_add_(axis, idx, src)
def _segment_sum(src, seg, n):
    out = torch.zeros((n,) + src.shape[1:], dtype=src.dtype)
    return out.index_add_(0, seg, src)
def _pad(x, pw):
    flat = tuple(v for pair in reversed(pw) for v in pair)
    return torch.nn.functional.pad(x, flat)

kernel_name = 'gated_mix__grouped_kv_mqa__linear_attn_block__prompt'

def setup_inputs():

    _w = (lambda a: (lambda t: t.to(torch.bfloat16) if t.is_floating_point() else t)(torch.as_tensor(a)))
    def _A_setup():
        B, S, D, H = 1, 2048, 576, 32
        Dh = D // H
        return {
            "x": _w((lambda *s: torch.randn(*s, dtype=torch.bfloat16) * 0.05)(B, S, D)),
            "wq": _w((lambda *s: torch.randn(*s, dtype=torch.bfloat16) * 1.6)(D, H * Dh)),
            "wk": _w((lambda *s: torch.randn(*s, dtype=torch.bfloat16) * 1.6)(D, Dh)),
            "wv": _w((lambda *s: torch.randn(*s, dtype=torch.bfloat16) * 0.05)(D, Dh)),
            "wo": _w((lambda *s: torch.randn(*s, dtype=torch.bfloat16) * 0.05)(H * Dh, D)),
        }
    _A_in = _A_setup()

    def _B_setup():
        B, S, D = 1, 2048, 576
        return {
            "x": _w((lambda *s: torch.randn(*s, dtype=torch.bfloat16) * 0.05)(B, S, D)),
            "wqkv": _w((lambda *s: torch.randn(*s, dtype=torch.bfloat16) * 1.6)(D, 3 * D)),
            "wo": _w((lambda *s: torch.randn(*s, dtype=torch.bfloat16) * 0.05)(D, D)),
        }
    _B_in = _B_setup()

    return {
        "A_x": _A_in["x"],
        "A_wq": _A_in["wq"],
        "A_wk": _A_in["wk"],
        "A_wv": _A_in["wv"],
        "A_wo": _A_in["wo"],
        "B_x": _B_in["x"],
        "B_wqkv": _B_in["wqkv"],
        "B_wo": _B_in["wo"],
        "gate_w": _w((lambda *s: torch.randn(*s, dtype=torch.bfloat16) * 0.05)(576) * 16.0),
    }

def reference(A_x, A_wq, A_wk, A_wv, A_wo, B_x, B_wqkv, B_wo, gate_w):
    def _A_ref(x, wq, wk, wv, wo):
        B, S, D = x.shape
        H = 32
        Dh = D // H
        q = (lambda x, *d: x.permute(*d))((x @ wq).reshape(B, S, H, Dh), 0, 2, 1, 3)
        k = x @ wk
        v = x @ wv
        scores = torch.einsum("bhqd,bkd->bhqk", q, k) * (Dh ** -0.5)
        p = _softmax(scores, axis=-1)
        o = torch.einsum("bhqk,bkd->bhqd", p, v)
        return (lambda x, *d: x.permute(*d))(o, 0, 2, 1, 3).reshape(B, S, H * Dh) @ wo

    def _B_ref(x, wqkv, wo):
        B, S, D = x.shape
        H = 32; Dh = D // H
        qkv = (lambda x, *d: x.permute(*d))((x @ wqkv).reshape(B, S, 3, H, Dh), 2, 0, 3, 1, 4)
        q, k, v = qkv[0], qkv[1], qkv[2]
        phi = lambda t: torch.where(t > 0, t + 1, torch.exp(t)) + 1e-6
        pq, pk = phi(q), phi(k)
        kv = torch.einsum("bhsd,bhse->bhde", pk, v)
        z = torch.einsum("bhsd->bhd", pk)
        num = torch.einsum("bhqd,bhde->bhqe", pq, kv)
        den = torch.einsum("bhqd,bhd->bhq", pq, z)[..., None] + 1e-6
        o = num / den
        return (lambda x, *d: x.permute(*d))(o, 0, 2, 1, 3).reshape(B, S, D) @ wo

    x = A_x
    g = _sigmoid((x * gate_w).sum(-1, keepdims=True))
    a = _A_ref(x, A_wq, A_wk, A_wv, A_wo)
    b = _B_ref(x, B_wqkv, B_wo)
    return g * a + (1 - g) * b
```

```python
class Asm:
    def __init__(self):
        self.lines = []
    def __call__(self, s=""):
        for l in s.split("\n"):
            l = l.rstrip()
            if l.strip() == "": continue
            if l.strip().endswith(":") or l.strip().startswith("."):
                self.lines.append(l.strip())
            else:
                self.lines.append("    " + l.strip())
    def c(self, s):
        self.lines.append("    ; " + s)
    def text(self):
        return "\n".join(self.lines) + "\n"

def vr(a, n=1):
    return f"v{a}" if n == 1 else f"v[{a}:{a+n-1}]"
def sr(a, n=1):
    return f"s{a}" if n == 1 else f"s[{a}:{a+n-1}]"

def kernel_header(name):
    return f""".text
.globl {name}
.p2align 8
.type {name},@function
{name}:
"""
def kernel_footer(name, nv, ns=102, wgy=False):
    acc = (nv + 3)//4*4
    return f"""    s_endpgm
.section .rodata,"a"
.p2align 6
.amdhsa_kernel {name}
  .amdhsa_next_free_vgpr {nv}
  .amdhsa_next_free_sgpr {ns}
  .amdhsa_accum_offset {acc}
  .amdhsa_group_segment_fixed_size 0
  .amdhsa_kernarg_size 96
  .amdhsa_user_sgpr_count 2
  .amdhsa_user_sgpr_kernarg_segment_ptr 1
  .amdhsa_system_sgpr_workgroup_id_x 1
  .amdhsa_float_denorm_mode_32 3
.end_amdhsa_kernel
"""

QFA0 = 0x0000000
QFB0 = 0x0200000
QFA1 = 0x0400000
QFB1 = 0x0440000
KIMG = 0x0480000
KMAX = 0x04B0000
GATE = 0x04B1000
KVP  = 0x04C0000
KVS  = 0x0580000
OF   = 0x0700000
WS_USED = 0x1000000
REC = 2368
KIMG_BYTES = 64*REC
```

```python
from asmlib import *
import os, struct, math
EXP = os.environ.get("K1EXP","")
XS = 16384
WB = 65536
WS_ = 20480
LDS = 147456
def f2u(x): return struct.unpack('<I', struct.pack('<f', x))[0]
CSCALE = f2u(1.4426950408889634/math.sqrt(18.0))
LOG2E = f2u(1.4426950408889634)
EPS6 = f2u(1e-6)
OOB = 0x7ff00000

def gen_k1(name="proj_kernel", stamp=False):
    a = Asm(); L = name
    nst = [0]
    def st(i):
        if stamp:
            nst[0] = max(nst[0], i+1)
            a(f"s_memtime s[{64+2*i}:{65+2*i}]")
    sRB, sCG, sW, sB, sC0, sCA = 12, 13, 14, 15, 16, 17
    SX, SWm, S9, SWS = 20, 24, 28, 32
    sWstr, s9str, sXo, sWo, s9o, sB1024 = 36, 37, 38, 39, 40, 41
    sT0, sT1, sT2, sT3, sT4, sT5 = 42, 43, 44, 45, 46, 47
    sColA, sRS, sKV = 48, 49, 50
    vN, vHH = 1, 2
    XF = [8, 16, 24]
    WF = [32, 44, 56]
    ACC = 68
    A4 = ACC + 64
    aX = 148; aW0 = 152; aW1 = 156; aT4 = 160
    vXo = 3; vWo = 4; vW9 = 148
    vT = 176
    NV = 200
    a(f"s_cmp_ge_u32 s2, 256")
    a(f"s_cbranch_scc1 {L}_end")
    a("s_load_dwordx4 s[4:7], s[0:1], 0")
    a("s_load_dwordx4 s[8:11], s[0:1], 16")
    a("s_load_dwordx2 s[52:53], s[0:1], 48")
    a("s_load_dwordx2 s[54:55], s[0:1], 64")
    a("s_load_dwordx2 s[56:57], s[0:1], 88")
    st(0)
    if stamp: a("s_memrealtime s[92:93]")
    a(f"s_and_b32 s{sT0}, s2, 7"); a(f"s_lshr_b32 s{sT1}, s2, 3")
    a(f"s_and_b32 s{sT2}, s{sT0}, 1"); a(f"s_lshl_b32 s{sT2}, s{sT2}, 3")
    a(f"s_and_b32 s{sT3}, s{sT1}, 7"); a(f"s_add_u32 s{sRB}, s{sT2}, s{sT3}")
    a(f"s_lshr_b32 s{sT2}, s{sT0}, 1"); a(f"s_lshl_b32 s{sT2}, s{sT2}, 2")
    a(f"s_lshr_b32 s{sT4}, s{sT1}, 3"); a(f"s_add_u32 s{sCG}, s{sT2}, s{sT4}")
    a(f"s_lshl_b32 s{sT4}, s{sT4}, 1"); a(f"s_add_u32 s{sC0}, s{sT3}, s{sT4}")
    a(f"s_cmp_ge_u32 s{sC0}, 9"); a(f"s_cselect_b32 s{sT4}, 9, 0"); a(f"s_sub_u32 s{sC0}, s{sC0}, s{sT4}")
    a(f"v_lshrrev_b32 v{vT}, 6, v0"); a(f"v_and_b32 v0, 63, v0")
    a(f"v_readfirstlane_b32 s{sW}, v{vT}")
    a(f"v_and_b32 v{vN}, 31, v0"); a(f"v_lshrrev_b32 v{vHH}, 5, v0")
    a("s_nop 0")
    a(f"s_and_b32 s{sB}, s{sW}, 3"); a(f"s_lshl_b32 s{sB1024}, s{sB}, 10")
    a(f"v_lshrrev_b32 v{vT+7}, 3, v0")
    a(f"s_lshl_b32 s{sT0}, s{sRB}, 7"); a(f"s_lshl_b32 s{sT1}, s{sB}, 3"); a(f"s_add_u32 s{sT0}, s{sT0}, s{sT1}")
    a(f"v_add_u32 v{vT+7}, s{sT0}, v{vT+7}")
    a(f"v_mul_u32_u24 v{vT+7}, 1152, v{vT+7}")
    a(f"s_and_b32 s{sT0}, s{sB}, 1"); a(f"s_lshl_b32 s{sT0}, s{sT0}, 2")
    a(f"v_lshrrev_b32 v{vT+8}, 4, v0"); a(f"v_add_u32 v{vT+8}, s{sT0}, v{vT+8}"); a(f"v_and_b32 v{vT+8}, 7, v{vT+8}")
    a(f"v_and_b32 v{vT+9}, 7, v0"); a(f"v_xor_b32 v{vT+8}, v{vT+8}, v{vT+9}"); a(f"v_lshlrev_b32 v{vT+8}, 4, v{vT+8}")
    a(f"v_add_u32 v{vXo}, v{vT+7}, v{vT+8}")
    a("s_waitcnt lgkmcnt(0)")
    def srd(d, lo, hi, n):
        a(f"s_mov_b32 s{d}, s{lo}"); a(f"s_and_b32 s{d+1}, s{hi}, 0xffff"); a(f"s_mov_b32 s{d+2}, {n}"); a(f"s_mov_b32 s{d+3}, 0x20000")
    srd(SX, 4, 5, 2048*1152)
    a(f"s_cmp_ge_u32 s{sCG}, 8"); a(f"s_cselect_b32 s{sKV}, 1, 0")
    a(f"s_cmp_ge_u32 s{sW}, 4"); a(f"s_cbranch_scc1 {L}_bsetup")
    def next_ca():
        a(f"s_add_u32 s{sCA}, s{sCA}, 1"); a(f"s_cmp_eq_u32 s{sCA}, 9"); a(f"s_cselect_b32 s{sCA}, 0, s{sCA}")
    def dma_x(c):
        s = c % 4
        a(f"s_lshl_b32 s{sXo}, s{sCA}, 7")
        for m in range(4):
            a(f"s_add_u32 m0, s{sB1024}, {s*XS + 4096*m}"); a(f"s_add_u32 s{sT0}, s{sXo}, {36864*m}")
            a(f"buffer_load_dwordx4 v{vXo}, s[{SX}:{SX+3}], s{sT0} offen lds")
    a(f"s_mov_b32 s{sCA}, s{sC0}")
    for c in range(4):
        dma_x(c); next_ca()
    srd(SWS, 56, 57, WS_USED)
    a(f"v_lshrrev_b32 v{vT}, 1, v{vN}"); a(f"v_and_b32 v{vT}, 7, v{vT}"); a(f"v_xor_b32 v{vT}, v{vT}, v{vHH}")
    a(f"v_lshlrev_b32 v{vT}, 4, v{vT}"); a(f"v_lshlrev_b32 v{vT+1}, 7, v{vN}"); a(f"v_add_u32 v{vT}, v{vT}, v{vT+1}")
    a(f"s_and_b32 s{sT0}, s{sW}, 1"); a(f"s_lshl_b32 s{sT0}, s{sT0}, 13")
    a(f"v_add_u32 v{aX}, s{sT0}, v{vT}")
    for ks in range(1,4): a(f"v_xor_b32 v{aX+ks}, {ks<<5}, v{aX}")
    vG2, vR, vC4, vK, vU = vT+2, vT+3, vT+4, vT+5, vT+6
    a(f"v_lshrrev_b32 v{vG2}, 4, v0"); a(f"v_and_b32 v{vG2}, 1, v{vG2}")
    a(f"v_lshrrev_b32 v{vR}, 2, v0"); a(f"v_and_b32 v{vR}, 3, v{vR}"); a(f"v_and_b32 v{vC4}, 3, v0")
    a(f"v_lshlrev_b32 v{vK}, 3, v{vHH}"); a(f"v_add_u32 v{vK}, v{vK}, v{vR}")
    a(f"v_add_u32 v{vU}, v{vG2}, v{vR}"); a(f"v_lshlrev_b32 v{vU}, 1, v{vU}")
    a(f"v_lshrrev_b32 v{vT+7}, 1, v{vC4}"); a(f"v_add_u32 v{vU}, v{vU}, v{vT+7}")
    a(f"v_mul_u32_u24 v{vT+7}, 288, v{vK}")
    a(f"v_and_b32 v{vT+8}, 1, v{vC4}"); a(f"v_lshlrev_b32 v{vT+8}, 3, v{vT+8}")
    a(f"v_add_u32 v{vT+7}, v{vT+7}, v{vT+8}"); a(f"v_add_u32 v{vT+7}, {WB}, v{vT+7}")
    a(f"s_lshr_b32 s{sT0}, s{sW}, 1"); a(f"s_lshl_b32 s{sT0}, s{sT0}, 3")
    for ib in range(2):
        for t in range(2):
            a(f"s_add_u32 s{sT1}, s{sT0}, {4*ib+8*t}")
            a(f"v_add_u32 v{vT+8}, s{sT1}, v{vU}"); a(f"v_and_b32 v{vT+8}, 15, v{vT+8}"); a(f"v_lshlrev_b32 v{vT+8}, 4, v{vT+8}")
            a(f"v_add_u32 v{aW0+2*ib+t}, v{vT+7}, v{vT+8}")
            a(f"v_add_u32 v{aW1+2*ib+t}, {3*WS_}, v{aW0+2*ib+t}")
    a(f"v_cmp_eq_u32 vcc, 0, v{vG2}")
    a(f"v_mov_b32 v{vT+7}, 32"); a(f"v_mov_b32 v{vT+8}, 288"); a(f"v_cndmask_b32 v{vT+7}, v{vT+7}, v{vT+8}, vcc")
    a(f"v_mov_b32 v{vT+8}, {WB+18432}"); a(f"v_mov_b32 v{vT+9}, {WB+256}"); a(f"v_cndmask_b32 v{vT+8}, v{vT+8}, v{vT+9}, vcc")
    a(f"v_lshlrev_b32 v{vT+9}, 3, v{vC4}"); a(f"v_add_u32 v{vT+8}, v{vT+8}, v{vT+9}")
    a(f"v_mul_lo_u32 v{vT+9}, v{vK}, v{vT+7}"); a(f"v_add_u32 v{vT+8}, v{vT+8}, v{vT+9}")
    a(f"v_lshlrev_b32 v{vT+7}, 2, v{vT+7}")
    for i in range(8):
        ks, t = divmod(i, 2)
        a(f"v_mad_u32_u24 v{aT4+i}, v{vT+7}, {4*ks+t}, v{vT+8}")
        a(f"v_add_u32 v{aT4+8+i}, {3*WS_}, v{aT4+i}")
    for r in range(80): a(f"v_mov_b32 v{ACC+r}, 0")
    def reads(c, ks, st_):
        s = c % 4; out = []
        for ia in range(2):
            out.append(f"ds_read_b128 v[{XF[st_]+4*ia}:{XF[st_]+4*ia+3}], v{aX+ks} offset:{s*XS + ia*4096}")
        for ib in range(2):
            for t in range(2):
                if s < 3: reg, off = aW0+2*ib+t, s*WS_ + (16*ks+4*t)*288
                else: reg, off = aW1+2*ib+t, (16*ks+4*t)*288
                out.append(f"ds_read_b64_tr_b16 v[{WF[st_]+4*ib+2*t}:{WF[st_]+4*ib+2*t+1}], v{reg} offset:{off}")
        for t in range(2):
            if s < 3: reg, off = aT4+2*ks+t, s*WS_
            else: reg, off = aT4+8+2*ks+t, 0
            out.append(f"ds_read_b64_tr_b16 v[{WF[st_]+8+2*t}:{WF[st_]+8+2*t+1}], v{reg} offset:{off}")
        return out
    def a_main(kv, ch):
        a("s_waitcnt vmcnt(12)")
        a("s_barrier"); st(1)
        for x in reads(0,0,0): a(x)
        for x in reads(0,1,1): a(x)
        for s_ in range(36):
            c, ks = divmod(s_, 4); cur = s_ % 3
            if ks == 2:
                a("s_waitcnt lgkmcnt(0)")
                if c < 3: a(f"s_waitcnt vmcnt({4*(2-c)})")
                a("s_barrier"); st(2+c)
            elif ks != 3:
                a("s_waitcnt lgkmcnt(8)")
            rd = reads(*divmod(s_+2, 4), (s_+2) % 3) if s_+2 < 36 else []
            mf = []
            for ia in range(2):
                for ib in range(2):
                    mf.append((ACC + 16*(2*ia+ib), XF[cur]+4*ia, WF[cur]+4*ib))
            mf.append((A4, XF[cur]+4*ch, WF[cur]+8))
            sched = [0,2,2,2,2]
            for i,(d,xr,wr) in enumerate(mf):
                for _ in range(sched[i]):
                    if rd: a(rd.pop(0))
                xa = f"v[{xr}:{xr+3}]"; wb = f"v[{wr}:{wr+3}]"
                if kv: a(f"v_mfma_f32_32x32x16_bf16 v[{d}:{d+15}], {xa}, {wb}, v[{d}:{d+15}]")
                else:  a(f"v_mfma_f32_32x32x16_bf16 v[{d}:{d+15}], {wb}, {xa}, v[{d}:{d+15}]")
            for x in rd: a(x)
    def phi(regs, tmp):
        a(f"v_mov_b32 v{vT+10}, {LOG2E}"); a(f"v_mov_b32 v{vT+11}, {EPS6}")
        for i,r in enumerate(regs): a(f"v_mul_f32 v{tmp+i}, v{r}, v{vT+10}")
        for i,r in enumerate(regs): a(f"v_exp_f32 v{tmp+i}, v{tmp+i} clamp")
        for i,r in enumerate(regs): a(f"v_max_f32 v{r}, 0, v{r}")
        for i,r in enumerate(regs): a(f"v_add_f32 v{tmp+i}, v{tmp+i}, v{vT+11}")
        for i,r in enumerate(regs): a(f"v_add_f32 v{r}, v{r}, v{tmp+i}")
    def kappa(dst):
        a(f"v_and_b32 v{dst}, 0x13, v{vN}")
        a(f"v_and_b32 v{vT+12}, 4, v{vN}"); a(f"v_lshlrev_b32 v{vT+12}, 1, v{vT+12}"); a(f"v_or_b32 v{dst}, v{dst}, v{vT+12}")
        a(f"v_and_b32 v{vT+12}, 8, v{vN}"); a(f"v_lshrrev_b32 v{vT+12}, 1, v{vT+12}"); a(f"v_or_b32 v{dst}, v{dst}, v{vT+12}")
    def wave_max_store(reg, arr_off):
        for d in ("row_shr:1","row_shr:2","row_shr:4","row_shr:8"):
            a("s_nop 1"); a(f"v_max_f32_dpp v{reg}, v{reg}, v{reg} {d} row_mask:0xf bank_mask:0xf bound_ctrl:0")
        a("s_nop 1"); a(f"v_max_f32_dpp v{reg}, v{reg}, v{reg} row_bcast:15 row_mask:0xa bank_mask:0xf")
        a("s_nop 1"); a(f"v_max_f32_dpp v{reg}, v{reg}, v{reg} row_bcast:31 row_mask:0xc bank_mask:0xf")
        a(f"s_lshl_b32 s{sT0}, s{sT4}, 2"); a(f"s_add_u32 s{sT0}, s{sT0}, {KMAX+arr_off}")
        a(f"v_mov_b32 v{vT+13}, {OOB}"); a(f"v_mov_b32 v{vT+14}, 0"); a(f"v_cmp_eq_u32 vcc, 63, v0"); a("s_nop 1")
        a(f"v_cndmask_b32 v{vT+13}, v{vT+13}, v{vT+14}, vcc")
        a(f"buffer_store_dword v{reg}, v{vT+13}, s[{SWS}:{SWS+3}], s{sT0} offen")
    a(f"s_lshr_b32 s{sT5}, s{sW}, 1")
    a(f"s_cmp_eq_u32 s{sKV}, 0"); a(f"s_cbranch_scc0 {L}_a_kv")
    a(f"s_cmp_eq_u32 s{sT5}, 0"); a(f"s_cbranch_scc0 {L}_a_q1")
    a_main(False, 0); a(f"s_branch {L}_a_qepi")
    a(f"{L}_a_q1:"); a_main(False, 1)
    a(f"{L}_a_qepi:")
    a("s_nop 7"); a("s_nop 7")
    a(f"s_and_b32 s{sT0}, s{sW}, 1"); a(f"s_lshl_b32 s{sT1}, s{sT0}, 1"); a(f"s_add_u32 s{sT3}, s{sT1}, s{sT5}")
    a(f"s_lshl_b32 s{sT4}, s{sRB}, 2"); a(f"s_add_u32 s{sT4}, s{sT4}, s{sT3}")
    a(f"s_mul_i32 s{sT0}, s{sT0}, {64*328}"); a(f"s_lshl_b32 s{sT1}, s{sT5}, 7"); a(f"s_add_u32 s{sT0}, s{sT0}, s{sT1}")
    a(f"v_mul_u32_u24 v{vT}, 328, v{vN}"); a(f"v_lshlrev_b32 v{vT+1}, 3, v{vHH}"); a(f"v_add_u32 v{vT}, v{vT}, v{vT+1}")
    a(f"v_add_u32 v{vT+1}, s{sT0}, v{vT}")
    for ia in range(2):
        for ib in range(2):
            d = ACC + 16*(2*ia+ib)
            for q in range(4):
                a(f"v_cvt_pk_bf16_f32 v{d+4*q}, v{d+4*q}, v{d+4*q+1}")
                a(f"v_cvt_pk_bf16_f32 v{d+4*q+1}, v{d+4*q+2}, v{d+4*q+3}")
                a(f"ds_write_b64 v{vT+1}, v[{d+4*q}:{d+4*q+1}] offset:{ia*32*328 + ib*64 + q*16}")
    a(f"s_mul_i32 s{sT0}, s{sT3}, {32*328}"); a(f"s_add_u32 s{sT0}, s{sT0}, 256"); a(f"v_add_u32 v{vT+1}, s{sT0}, v{vT}")
    for q in range(2):
        a(f"v_cvt_pk_bf16_f32 v{8+2*q}, v{A4+4*q}, v{A4+4*q+1}"); a(f"v_cvt_pk_bf16_f32 v{9+2*q}, v{A4+4*q+2}, v{A4+4*q+3}")
        a(f"ds_write_b64 v{vT+1}, v[{8+2*q}:{9+2*q}] offset:{q*16}")
    a(f"s_cmp_eq_u32 s{sCG}, 0"); a(f"s_cbranch_scc0 {L}_notalpha")
    a(f"v_mov_b32 v{vT+2}, {CSCALE}")
    for r in range(8,16): a(f"v_mul_f32 v{A4+r}, v{A4+r}, v{vT+2}")
    for i in range(4): a(f"v_cvt_pk_bf16_f32 v{12+i}, v{A4+8+2*i}, v{A4+9+2*i}")
    kappa(vT+3)
    a(f"v_lshlrev_b32 v{vT+4}, 5, v{vHH}"); a(f"v_add_u32 v{vT+3}, v{vT+3}, v{vT+4}"); a(f"v_lshlrev_b32 v{vT+3}, 4, v{vT+3}")
    a(f"s_mul_i32 s{sT0}, s{sT4}, {REC}"); a(f"s_add_u32 s{sT0}, s{sT0}, {KIMG}")
    a(f"buffer_store_dwordx4 v[12:15], v{vT+3}, s[{SWS}:{SWS+3}], s{sT0} offen")
    a(f"v_mov_b32 v{vT+5}, 0"); a("s_nop 0")
    for i in range(4):
        a(f"v_dot2_f32_bf16 v{vT+5}, v{12+i}, v{12+i}, v{vT+5}"); a("s_nop 2")
    a(f"v_mov_b32 v{vT+6}, v{vT+5}"); a("s_nop 1"); a(f"v_permlane32_swap_b32 v{vT+5}, v{vT+6}"); a("s_nop 1")
    a(f"v_add_f32 v{vT+5}, v{vT+5}, v{vT+6}")
    wave_max_store(vT+5, 0)
    a(f"{L}_notalpha:")
    a(f"s_cmp_eq_u32 s{sCG}, 1"); a(f"s_cbranch_scc0 {L}_notbeta")
    a(f"v_mov_b32 v{vT+2}, {CSCALE}")
    for r in range(8,10): a(f"v_mul_f32 v{A4+r}, v{A4+r}, v{vT+2}")
    a(f"v_cvt_pk_bf16_f32 v12, v{A4+8}, v{A4+9}")
    kappa(vT+3)
    a(f"v_lshlrev_b32 v{vT+3}, 2, v{vT+3}")
    a(f"v_mov_b32 v{vT+4}, {OOB}"); a(f"v_cmp_eq_u32 vcc, 0, v{vHH}"); a("s_nop 1")
    a(f"v_cndmask_b32 v{vT+3}, v{vT+4}, v{vT+3}, vcc"); a(f"v_cndmask_b32 v12, 0, v12, vcc")
    a(f"s_mul_i32 s{sT0}, s{sT4}, {REC}"); a(f"s_add_u32 s{sT0}, s{sT0}, {KIMG+1024}")
    a(f"buffer_store_dword v12, v{vT+3}, s[{SWS}:{SWS+3}], s{sT0} offen")
    a(f"v_mov_b32 v{vT+5}, 0"); a("s_nop 0")
    a(f"v_dot2_f32_bf16 v{vT+5}, v12, v12, v{vT+5}"); a("s_nop 2")
    wave_max_store(vT+5, 256)
    a(f"{L}_notbeta:")
    a(f"s_cmp_eq_u32 s{sCG}, 2"); a(f"s_cbranch_scc0 {L}_qout")
    a(f"v_add_f32 v{vT+5}, v{A4+8}, v{A4+13}")
    a(f"v_mul_f32 v{vT+5}, {f2u(-1.4426950408889634)}, v{vT+5}")
    a(f"v_exp_f32 v{vT+5}, v{vT+5}"); a("s_nop 0"); a(f"v_add_f32 v{vT+5}, 1.0, v{vT+5}"); a(f"v_rcp_f32 v{vT+5}, v{vT+5}")
    a(f"v_lshlrev_b32 v{vT+3}, 2, v{vN}"); a(f"v_mov_b32 v{vT+4}, {OOB}"); a(f"v_cmp_eq_u32 vcc, 0, v{vHH}"); a("s_nop 1")
    a(f"v_cndmask_b32 v{vT+3}, v{vT+4}, v{vT+3}, vcc")
    a(f"s_lshl_b32 s{sT0}, s{sT4}, 7"); a(f"s_add_u32 s{sT0}, s{sT0}, {GATE}")
    a(f"buffer_store_dword v{vT+5}, v{vT+3}, s[{SWS}:{SWS+3}], s{sT0} offen")
    a(f"{L}_qout:")
    st(11)
    a("s_waitcnt lgkmcnt(0)"); a("s_barrier")
    a(f"s_and_b32 s{sT0}, s{sW}, 3"); a(f"s_lshr_b32 s{sT1}, s{sW}, 2")
    a(f"s_mul_i32 s{sT2}, s{sT0}, {32*328}"); a(f"s_mul_i32 s{sT3}, s{sT1}, 144"); a(f"s_add_u32 s{sT2}, s{sT2}, s{sT3}")
    a(f"v_mul_u32_u24 v{vT}, 328, v{vN}"); a(f"v_lshlrev_b32 v{vT+1}, 3, v{vHH}")
    a(f"v_add_u32 v{vT}, v{vT}, v{vT+1}"); a(f"v_add_u32 v{vT}, s{sT2}, v{vT}")
    for h in range(4):
        a(f"ds_read2_b32 v[{8+6*h}:{9+6*h}], v{vT} offset0:{9*h} offset1:{9*h+1}")
        a(f"ds_read2_b32 v[{10+6*h}:{11+6*h}], v{vT} offset0:{9*h+4} offset1:{9*h+5}")
        a(f"ds_read_b32 v{12+6*h}, v{vT} offset:{(9*h+8)*4}")
    a(f"s_and_b32 s{sT2}, s{sCG}, 3"); a(f"s_lshl_b32 s{sT2}, s{sT2}, 3"); a(f"s_lshl_b32 s{sT1}, s{sT1}, 2"); a(f"s_add_u32 s{sT2}, s{sT2}, s{sT1}")
    a(f"s_lshl_b32 s{sT2}, s{sT2}, 6"); a(f"s_lshl_b32 s{sT3}, s{sRB}, 2"); a(f"s_add_u32 s{sT2}, s{sT2}, s{sT3}"); a(f"s_add_u32 s{sT2}, s{sT2}, s{sT0}")
    a(f"s_cmp_ge_u32 s{sCG}, 4")
    a(f"s_cselect_b32 s{sT4}, {QFB0}, {QFA0}"); a(f"s_mov_b32 s{sT5}, {QFA1}"); a(f"s_cmov_b32 s{sT5}, {QFB1}")
    a(f"s_lshl_b32 s{sT0}, s{sT2}, 10"); a(f"s_add_u32 s{sT4}, s{sT4}, s{sT0}")
    a(f"s_lshl_b32 s{sT0}, s{sT2}, 7"); a(f"s_add_u32 s{sT5}, s{sT5}, s{sT0}")
    a(f"v_lshlrev_b32 v{vT+2}, 4, v0")
    a(f"v_lshlrev_b32 v{vT+3}, 2, v{vN}"); a(f"v_mov_b32 v{vT+4}, {OOB}"); a(f"v_cmp_eq_u32 vcc, 0, v{vHH}"); a("s_nop 1")
    a(f"v_cndmask_b32 v{vT+3}, v{vT+4}, v{vT+3}, vcc")
    for h in range(4):
        a(f"s_waitcnt lgkmcnt({3*(3-h)})")
        a(f"buffer_store_dwordx4 v[{8+6*h}:{11+6*h}], v{vT+2}, s[{SWS}:{SWS+3}], s{sT4} offen")
        a(f"buffer_store_dword v{12+6*h}, v{vT+3}, s[{SWS}:{SWS+3}], s{sT5} offen")
        if h < 3:
            a(f"s_add_u32 s{sT4}, s{sT4}, 65536"); a(f"s_add_u32 s{sT5}, s{sT5}, 8192")
    a(f"s_branch {L}_fin")
    a(f"{L}_a_kv:")
    a(f"s_cmp_eq_u32 s{sT5}, 0"); a(f"s_cbranch_scc0 {L}_a_kv1")
    a_main(True, 0); a(f"s_branch {L}_a_kvepi")
    a(f"{L}_a_kv1:"); a_main(True, 1)
    a(f"{L}_a_kvepi:")
    a("s_nop 7"); a("s_nop 7")
    a(f"s_and_b32 s{sT0}, s{sW}, 1"); a(f"s_lshl_b32 s{sT1}, s{sT0}, 1"); a(f"s_add_u32 s{sT3}, s{sT1}, s{sT5}")
    a(f"s_lshl_b32 s{sT4}, s{sRB}, 2"); a(f"s_add_u32 s{sT4}, s{sT4}, s{sT3}")
    a(f"s_and_b32 s{sT0}, s{sCG}, 14"); a(f"s_cmp_eq_u32 s{sT0}, 8"); a(f"s_cbranch_scc0 {L}_noV")
    for i in range(8): a(f"v_cvt_pk_bf16_f32 v{8+i}, v{A4+2*i}, v{A4+2*i+1}")
    a(f"s_and_b32 s{sT1}, s{sCG}, 1"); a(f"s_lshl_b32 s{sT2}, s{sT1}, 4")
    a(f"v_subrev_u32 v{vT+2}, 16, v{vN}"); a(f"v_add_u32 v{vT+3}, s{sT2}, v{vT+2}")
    a(f"s_cmp_eq_u32 s{sT1}, 0"); a(f"s_cselect_b32 s{sT2}, 16, 3")
    a(f"v_cmp_gt_u32 vcc, s{sT2}, v{vT+2}")
    a(f"v_lshlrev_b32 v{vT+3}, 4, v{vT+3}"); a(f"v_mul_u32_u24 v{vT+4}, 304, v{vHH}"); a(f"v_add_u32 v{vT+3}, v{vT+3}, v{vT+4}")
    a(f"v_mov_b32 v{vT+4}, {OOB}"); a(f"v_cndmask_b32 v{vT+3}, v{vT+4}, v{vT+3}, vcc")
    a(f"v_cmp_eq_u32 vcc, 18, v{vN}"); a(f"s_cmp_eq_u32 s{sT1}, 1"); a(f"s_cselect_b64 s[{sT0}:{sT0+1}], -1, 0"); a("s_nop 1")
    a(f"s_and_b64 vcc, vcc, s[{sT0}:{sT0+1}]")
    a(f"v_mov_b32 v{vT+5}, 0x3f803f80")
    for i in range(8): a(f"v_cndmask_b32 v{8+i}, v{8+i}, v{vT+5}, vcc")
    a(f"s_mul_i32 s{sT0}, s{sT4}, {REC}"); a(f"s_add_u32 s{sT0}, s{sT0}, {KIMG+1152}")
    a(f"buffer_store_dwordx4 v[8:11], v{vT+3}, s[{SWS}:{SWS+3}], s{sT0} offen")
    a(f"buffer_store_dwordx4 v[12:15], v{vT+3}, s[{SWS}:{SWS+3}], s{sT0} offen offset:608")
    a(f"{L}_noV:")
    for ia in range(2):
        d = ACC + 16*(2*ia)
        phi(list(range(d, d+16)), 16)
    for r in range(16): a(f"v_mov_b32 v{32+r}, v{A4+r}")
    phi(list(range(32,48)), 16)
    a(f"v_cmp_gt_u32 vcc, 8, v{vN}"); a("s_nop 1")
    for r in range(16): a(f"v_cndmask_b32 v{A4+r}, v{A4+r}, v{32+r}, vcc")
    a(f"s_mul_i32 s{sT1}, s{sT5}, {32*272}"); a(f"s_and_b32 s{sT0}, s{sW}, 1"); a(f"s_lshl_b32 s{sT0}, s{sT0}, 7"); a(f"s_add_u32 s{sT0}, s{sT0}, s{sT1}")
    a(f"v_mul_u32_u24 v{vT}, 272, v{vN}"); a(f"v_lshlrev_b32 v{vT+1}, 3, v{vHH}")
    a(f"v_add_u32 v{vT}, v{vT}, v{vT+1}"); a(f"v_add_u32 v{vT}, s{sT0}, v{vT}")
    for ia in range(2):
        for ib in range(2):
            d = ACC + 16*(2*ia+ib)
            for q in range(4):
                a(f"v_cvt_pk_bf16_f32 v{d+4*q}, v{d+4*q}, v{d+4*q+1}")
                a(f"v_cvt_pk_bf16_f32 v{d+4*q+1}, v{d+4*q+2}, v{d+4*q+3}")
                a(f"ds_write_b64 v{vT}, v[{d+4*q}:{d+4*q+1}] offset:{ib*72*272 + ia*64 + q*16}")
    a(f"v_add_u32 v{vT+2}, 64, v{vN}"); a(f"v_add_u32 v{vT+3}, 128, v{vN}"); a(f"v_cmp_gt_u32 vcc, 8, v{vN}"); a("s_nop 1")
    a(f"v_cndmask_b32 v{vT+2}, v{vT+3}, v{vT+2}, vcc")
    a(f"v_cmp_gt_u32 vcc, 16, v{vN}"); a(f"v_mov_b32 v{vT+3}, 146"); a("s_nop 0"); a(f"v_cndmask_b32 v{vT+2}, v{vT+3}, v{vT+2}, vcc")
    a(f"v_mul_u32_u24 v{vT}, 272, v{vT+2}"); a(f"v_lshlrev_b32 v{vT+1}, 3, v{vHH}"); a(f"v_add_u32 v{vT}, v{vT}, v{vT+1}")
    a(f"s_lshl_b32 s{sT0}, s{sT3}, 6"); a(f"v_add_u32 v{vT}, s{sT0}, v{vT}")
    for q in range(4):
        a(f"v_cvt_pk_bf16_f32 v{A4+4*q}, v{A4+4*q}, v{A4+4*q+1}"); a(f"v_cvt_pk_bf16_f32 v{A4+4*q+1}, v{A4+4*q+2}, v{A4+4*q+3}")
        a(f"ds_write_b64 v{vT}, v[{A4+4*q}:{A4+4*q+1}] offset:{q*16}")
    a(f"{L}_kvout:")
    st(11)
    a("s_waitcnt lgkmcnt(0)"); a("s_barrier")
    a(f"s_cmp_ge_u32 s{sW}, 4"); a(f"s_cbranch_scc1 {L}_fin")
    a(f"s_mul_i32 s{sT0}, s{sW}, 18")
    a(f"v_add_u32 v{vT}, s{sT0}, v{vN}"); a(f"v_mul_u32_u24 v{vT}, 272, v{vT}"); a(f"v_lshlrev_b32 v{vT+1}, 4, v{vHH}")
    a(f"v_add_u32 v{vT}, v{vT}, v{vT+1}")
    a(f"s_add_u32 s{sT0}, s{sT0}, 72")
    a(f"v_add_u32 v{vT+2}, s{sT0}, v{vN}"); a(f"v_mov_b32 v{vT+3}, 144"); a(f"v_cmp_gt_u32 vcc, 18, v{vN}"); a("s_nop 1")
    a(f"v_cndmask_b32 v{vT+2}, v{vT+3}, v{vT+2}, vcc"); a(f"v_mul_u32_u24 v{vT+2}, 272, v{vT+2}"); a(f"v_add_u32 v{vT+2}, v{vT+2}, v{vT+1}")
    for ks in range(8):
        a(f"ds_read_b128 v[{8+8*ks}:{11+8*ks}], v{vT} offset:{32*ks}")
        a(f"ds_read_b128 v[{12+8*ks}:{15+8*ks}], v{vT+2} offset:{32*ks}")
    D = 80
    for ks in range(8):
        a(f"s_waitcnt lgkmcnt({min(15,2*(7-ks))})")
        c = "0" if ks == 0 else f"v[{D}:{D+15}]"
        a(f"v_mfma_f32_32x32x16_bf16 v[{D}:{D+15}], v[{8+8*ks}:{11+8*ks}], v[{12+8*ks}:{15+8*ks}], {c}")
    a(f"s_sub_u32 s{sT0}, s{sCG}, 8"); a(f"s_lshl_b32 s{sT0}, s{sT0}, 2"); a(f"s_add_u32 s{sT0}, s{sT0}, s{sW}")
    a(f"s_lshl_b32 s{sT0}, s{sT0}, 4"); a(f"s_add_u32 s{sT0}, s{sT0}, s{sRB}"); a(f"s_mul_i32 s{sT0}, s{sT0}, 1408"); a(f"s_add_u32 s{sT0}, s{sT0}, {KVP}")
    a(f"v_mul_u32_u24 v{vT+4}, 19, v{vHH}"); a(f"v_add_u32 v{vT+4}, v{vT+4}, v{vN}"); a(f"v_lshlrev_b32 v{vT+4}, 4, v{vT+4}")
    a(f"v_mov_b32 v{vT+5}, {OOB}"); a(f"v_cmp_gt_u32 vcc, 19, v{vN}"); a("s_nop 1"); a(f"v_cndmask_b32 v{vT+4}, v{vT+5}, v{vT+4}, vcc")
    a(f"v_lshlrev_b32 v{vT+6}, 3, v{vN}"); a(f"v_cmp_gt_u32 vcc, 19, v0"); a("s_nop 1"); a(f"v_cndmask_b32 v{vT+6}, v{vT+5}, v{vT+6}, vcc")
    a("s_nop 7"); a("s_nop 3")
    a(f"buffer_store_dwordx4 v[{D}:{D+3}], v{vT+4}, s[{SWS}:{SWS+3}], s{sT0} offen")
    a(f"buffer_store_dwordx4 v[{D+4}:{D+7}], v{vT+4}, s[{SWS}:{SWS+3}], s{sT0} offen offset:608")
    a(f"buffer_store_dwordx2 v[{D+8}:{D+9}], v{vT+6}, s[{SWS}:{SWS+3}], s{sT0} offen offset:1216")
    a(f"s_branch {L}_fin")
    a(f"{L}_bsetup:")
    srd(SWS, 56, 57, WS_USED)
    a(f"s_cmp_lt_u32 s{sCG}, 4")
    a(f"s_cselect_b32 s{sT0}, s6, s52"); a(f"s_cselect_b32 s{sT1}, s7, s53")
    a(f"s_mov_b32 s{sRS}, 3456"); a(f"s_cmov_b32 s{sRS}, 1152")
    a(f"s_mov_b32 s{sT2}, {576*3456}"); a(f"s_cmov_b32 s{sT2}, {576*1152}")
    a(f"s_mov_b32 s{SWm}, s{sT0}"); a(f"s_and_b32 s{SWm+1}, s{sT1}, 0xffff"); a(f"s_mov_b32 s{SWm+2}, s{sT2}"); a(f"s_mov_b32 s{SWm+3}, 0x20000")
    a(f"s_and_b32 s{sT0}, s{sCG}, 3"); a(f"s_mul_i32 s{sT0}, s{sT0}, 288")
    a(f"s_sub_u32 s{sT1}, s{sCG}, 8"); a(f"s_mul_i32 s{sT1}, s{sT1}, 144"); a(f"s_add_u32 s{sT1}, s{sT1}, 1152")
    a(f"s_cmp_eq_u32 s{sKV}, 0"); a(f"s_cselect_b32 s{sColA}, s{sT0}, s{sT1}")
    a(f"s_lshl_b32 s{sWstr}, s{sRS}, 6")
    def w_off(dst, i_s):
        a(f"s_lshl_b32 s{sT2}, s{i_s}, 6")
        a(f"v_add_u32 v{vT+7}, s{sT2}, v0")
        a(f"v_mul_u32_u24 v{vT+8}, 3641, v{vT+7}"); a(f"v_lshrrev_b32 v{vT+8}, 16, v{vT+8}")
        a(f"v_mul_u32_u24 v{vT+9}, 18, v{vT+8}"); a(f"v_sub_u32 v{vT+9}, v{vT+7}, v{vT+9}")
        a(f"v_lshlrev_b32 v{vT+10}, 1, v{vT+8}"); a(f"v_sub_u32 v{vT+10}, v{vT+9}, v{vT+10}"); a(f"v_and_b32 v{vT+10}, 15, v{vT+10}")
        a(f"v_cmp_gt_u32 vcc, 16, v{vT+9}"); a("s_nop 1")
        a(f"v_cndmask_b32 v{vT+9}, v{vT+9}, v{vT+10}, vcc")
        a(f"s_cmp_eq_u32 s{sKV}, 0"); a(f"s_cbranch_scc1 {L}_wq{dst}")
        a(f"v_lshrrev_b32 v{vT+10}, 3, v{vT+9}"); a(f"v_lshlrev_b32 v{vT+10}, 2, v{vT+10}")
        a(f"v_and_b32 v{vT+11}, 3, v{vT+9}"); a(f"v_add_u32 v{vT+10}, v{vT+10}, v{vT+11}")
        a(f"v_lshrrev_b32 v{vT+11}, 2, v{vT+9}"); a(f"v_and_b32 v{vT+11}, 1, v{vT+11}")
        a(f"v_cmp_eq_u32 vcc, 17, v{vT+9}"); a(f"v_mov_b32 v{vT+12}, 8"); a(f"v_mov_b32 v{vT+13}, 1")
        a(f"v_cndmask_b32 v{vT+10}, v{vT+10}, v{vT+12}, vcc"); a(f"v_cndmask_b32 v{vT+11}, v{vT+11}, v{vT+13}, vcc")
        a(f"v_mul_u32_u24 v{vT+11}, 72, v{vT+11}"); a(f"v_add_u32 v{vT+9}, v{vT+10}, v{vT+11}")
        a(f"{L}_wq{dst}:")
        a(f"v_lshlrev_b32 v{vT+9}, 4, v{vT+9}")
        a(f"v_mul_lo_u32 v{vT+8}, v{vT+8}, s{sRS}")
        a(f"v_add_u32 v{vT+9}, v{vT+9}, v{vT+8}")
        a(f"v_add_u32 v{dst}, s{sColA}, v{vT+9}")
    def dma_w(c, ms):
        s = c % 4
        for m in ms:
            if m < 4:
                a(f"s_add_u32 m0, s{sB1024}, {WB + s*WS_ + 4096*m}"); a("s_nop 0")
                a(f"buffer_load_dwordx4 v{vWo+m}, s[{SWm}:{SWm+3}], s{sWo} offen lds")
            else:
                a(f"s_add_u32 m0, s{sB1024}, {WB + s*WS_ + 16384}"); a("s_nop 0")
                a(f"buffer_load_dwordx4 v{vW9}, s[{S9}:{S9+3}], s{s9o} offen lds")
    def w_soff():
        a(f"s_mul_i32 s{sWo}, s{sCA}, s{sWstr}"); a(f"s_mul_i32 s{s9o}, s{sCA}, s{s9str}")
    for m in range(4):
        a(f"s_add_u32 s{sT3}, s{sB}, {4*m}")
        w_off(vWo+m, sT3)
    a(f"s_add_u32 s{sT3}, s{sB}, 16")
    w_off(vW9, sT3)
    a(f"s_mov_b32 s{S9}, s{SWm}"); a(f"s_mov_b32 s{S9+1}, s{SWm+1}"); a(f"s_mov_b32 s{S9+2}, s{SWm+2}"); a(f"s_mov_b32 s{S9+3}, 0x20000")
    a(f"s_mov_b32 s{s9str}, s{sWstr}")
    a(f"s_cmp_lt_u32 s{sB}, 2"); a(f"s_cbranch_scc1 {L}_b9done")
    a(f"s_sub_u32 s{sT0}, s{sB}, 2"); a(f"s_lshl_b32 s{sT0}, s{sT0}, 5")
    a(f"v_lshrrev_b32 v{vT+7}, 1, v0"); a(f"v_add_u32 v{vT+7}, s{sT0}, v{vT+7}")
    a(f"v_and_b32 v{vT+8}, 1, v0")
    a(f"s_cmp_eq_u32 s{sCG}, 2"); a(f"s_cbranch_scc1 {L}_bgate")
    a(f"s_cmp_ge_u32 s{sCG}, 8")
    a(f"s_cselect_b32 s{S9}, s10, s8"); a(f"s_cselect_b32 s{sT0}, s11, s9"); a(f"s_and_b32 s{S9+1}, s{sT0}, 0xffff")
    a(f"s_and_b32 s{sT0}, s{sCG}, 6"); a(f"s_cmp_eq_u32 s{sT0}, 0"); a(f"s_cselect_b32 s{S9+2}, {576*36}, 0")
    a(f"s_movk_i32 s{s9str}, 2304")
    a(f"v_mul_u32_u24 v{vT+7}, 36, v{vT+7}"); a(f"v_lshlrev_b32 v{vT+8}, 4, v{vT+8}"); a(f"v_add_u32 v{vT+7}, v{vT+7}, v{vT+8}")
    a(f"s_and_b32 s{sT0}, s{sCG}, 1"); a(f"s_lshl_b32 s{sT0}, s{sT0}, 5")
    a(f"v_add_u32 v{vW9}, s{sT0}, v{vT+7}")
    a(f"s_branch {L}_b9done")
    a(f"{L}_bgate:")
    a(f"s_mov_b32 s{S9}, s54"); a(f"s_and_b32 s{S9+1}, s55, 0xffff"); a(f"s_movk_i32 s{S9+2}, 1152"); a(f"s_movk_i32 s{s9str}, 128")
    a(f"v_and_b32 v{vT+9}, 1, v{vT+7}"); a(f"v_cmp_eq_u32 vcc, v{vT+9}, v{vT+8}")
    a(f"v_and_b32 v{vT+7}, 0xfffffffe, v{vT+7}"); a(f"v_lshlrev_b32 v{vT+7}, 1, v{vT+7}"); a(f"v_mov_b32 v{vT+8}, {OOB}")
    a(f"v_cndmask_b32 v{vW9}, v{vT+8}, v{vT+7}, vcc")
    a(f"{L}_b9done:")
    a(f"s_mov_b32 s{sCA}, s{sC0}")
    for c in range(4):
        w_soff(); dma_w(c, range(5)); next_ca()
    a("s_waitcnt vmcnt(15)")
    a("s_barrier"); st(1)
    waits = {0:10, 1:14, 2:18, 3:18, 4:18, 5:18, 6:9, 7:0}
    for c in range(9):
        if c < 8: a(f"s_waitcnt vmcnt({waits[c]})")
        a("s_barrier"); st(2+c)
        if c+4 <= 8:
            dma_x(c+4); w_soff(); dma_w(c+4, range(5)); next_ca()
    a(f"s_cmp_eq_u32 s{sKV}, 0"); a(f"s_cbranch_scc1 {L}_qout")
    a(f"v_mov_b32 v8, 0x3f803f80"); a("v_mov_b32 v9, v8"); a("v_mov_b32 v10, v8"); a("v_mov_b32 v11, v8")
    a(f"v_lshlrev_b32 v{vT+2}, 4, v0"); a(f"v_and_b32 v{vT+2}, 255, v{vT+2}"); a(f"v_add_u32 v{vT+2}, {144*272}, v{vT+2}")
    a(f"ds_write_b128 v{vT+2}, v[8:11]")
    a(f"s_branch {L}_kvout")
    a(f"{L}_fin:")
    if stamp:
        st(12)
        a("s_memrealtime s[94:95]"); a("s_mov_b64 exec, -1"); a("s_waitcnt lgkmcnt(0)")
        a(f"s_lshl_b32 s{sT2}, s2, 3"); a(f"s_add_u32 s{sT2}, s{sT2}, s{sW}"); a(f"s_lshl_b32 s{sT2}, s{sT2}, 6"); a(f"s_add_u32 s{sT2}, s{sT2}, 0xF40000")
        a(f"v_mov_b32 v1, 0")
        for i in range(nst[0]):
            a(f"s_sub_u32 s{sT3}, s{64+2*i}, s64"); a(f"v_mov_b32 v2, s{sT3}")
            a(f"buffer_store_dword v2, v1, s[{SWS}:{SWS+3}], s{sT2} offen offset:{4*i}")
        a(f"s_sub_u32 s{sT3}, s94, s92"); a(f"v_mov_b32 v2, s{sT3}")
        a(f"buffer_store_dword v2, v1, s[{SWS}:{SWS+3}], s{sT2} offen offset:60")
        a(f"v_mov_b32 v2, s92")
        a(f"buffer_store_dword v2, v1, s[{SWS}:{SWS+3}], s{sT2} offen offset:56")
    a(f"{L}_end:")
    return kernel_header(name) + a.text() + kernel_footer(name, NV)
if __name__ == "__main__":
    print(gen_k1())
```

```python
from asmlib import *

def gen_k2(name="attn_kernel", stamp=False):
    a = Asm()
    L = name
    vLane16 = 4
    vT0, vT1, vT2, vT3 = 1, 2, 3, 5
    QA = [8, 14]
    O  = [20, 36]
    S  = [52, 68, 84, 100]
    KV = [116, 130]
    vAK, vAK1, vAV, vIdx = 144, 145, 146, 147
    vMM = [148, 149]
    QB = 150
    vG = 155
    KVPR = 156
    T = 236
    sJ, sR, sW, sHL, sKH = 12, 13, 14, 15, 16
    sA = 17
    SRD = 8
    SRDK = 20
    sFlag = 24
    sCnt = 25
    sT0, sT1, sT2, sT3 = 26, 27, 28, 29
    sKmax = 30
    nst = [0]
    def st():
        if stamp:
            i = nst[0]; nst[0] += 1
            a(f"s_memtime s[{40+2*i}:{41+2*i}]")
    K = lambda p: KV[p]
    K1 = lambda p: KV[p]+4
    V0 = lambda p: KV[p]+6
    V1 = lambda p: KV[p]+10

    a(f"s_cmp_ge_u32 s2, 256")
    a(f"s_cbranch_scc1 {L}_end")
    a("s_load_dwordx2 s[4:5], s[0:1], 88")
    st()
    if stamp: a("s_memrealtime s[70:71]")
    a(f"s_and_b32 s{sJ}, s2, 7")
    a(f"s_lshr_b32 s{sR}, s2, 3")
    a(f"v_lshrrev_b32 v{vT0}, 6, v0")
    a(f"v_and_b32 v0, 63, v0")
    a(f"v_readfirstlane_b32 s{sW}, v{vT0}")
    a(f"v_lshlrev_b32 v{vLane16}, 4, v0")
    a(f"v_lshrrev_b32 v{vT1}, 5, v0")
    a(f"v_and_b32 v{vT2}, 31, v0")
    a("s_nop 0")
    a(f"s_and_b32 s{sHL}, s{sW}, 3")
    a(f"s_lshr_b32 s{sKH}, s{sW}, 2")
    a(f"s_lshl_b32 s{sA}, s{sW}, 10")
    a("s_waitcnt lgkmcnt(0)")
    a(f"s_mov_b32 s{SRD}, s4")
    a(f"s_and_b32 s{SRD+1}, s5, 0xffff")
    a(f"s_mov_b32 s{SRD+2}, {WS_USED}")
    a(f"s_mov_b32 s{SRD+3}, 0x20000")
    a(f"s_add_u32 s{SRDK}, s4, {KIMG}")
    a(f"s_addc_u32 s{SRDK+1}, s5, 0")
    a(f"s_and_b32 s{SRDK+1}, s{SRDK+1}, 0xffff")
    a(f"s_mov_b32 s{SRDK+2}, {KIMG_BYTES}")
    a(f"s_mov_b32 s{SRDK+3}, 0x20000")
    a(f"s_lshl_b32 s{sT0}, s{sJ}, 2")
    a(f"s_add_u32 s{sT0}, s{sT0}, s{sHL}")
    a(f"s_lshl_b32 s{sT1}, s{sT0}, 6")
    a(f"s_lshl_b32 s{sT2}, s{sR}, 1")
    a(f"s_add_u32 s{sT1}, s{sT1}, s{sT2}")
    a(f"s_lshl_b32 s{sT2}, s{sT1}, 10")
    a(f"v_lshlrev_b32 v{vT3}, 2, v{vT2}")
    a(f"v_cmp_eq_u32 vcc, 0, v{vT1}")
    a(f"v_mov_b32 v{T}, 0x7ff00000")
    a(f"v_cndmask_b32 v{vT3}, v{T}, v{vT3}, vcc")
    a(f"buffer_load_dwordx4 v[{QA[0]}:{QA[0]+3}], v{vLane16}, s[{SRD}:{SRD+3}], s{sT2} offen")
    a(f"buffer_load_dwordx4 v[{QA[1]}:{QA[1]+3}], v{vLane16}, s[{SRD}:{SRD+3}], s{sT2} offen offset:1024")
    a(f"s_lshl_b32 s{sT3}, s{sT1}, 7")
    a(f"s_add_u32 s{sT3}, s{sT3}, {QFA1}")
    a(f"buffer_load_dword v{QA[0]+4}, v{vT3}, s[{SRD}:{SRD+3}], s{sT3} offen")
    a(f"buffer_load_dword v{QA[1]+4}, v{vT3}, s[{SRD}:{SRD+3}], s{sT3} offen offset:128")
    a(f"v_lshlrev_b32 v{T+1}, 2, v0")
    a(f"s_mov_b32 s{sCnt}, {KMAX}")
    a(f"buffer_load_dword v{T+2}, v{T+1}, s[{SRD}:{SRD+3}], s{sCnt} offen")
    a(f"buffer_load_dword v{T+3}, v{T+1}, s[{SRD}:{SRD+3}], s{sCnt} offen offset:256")
    def dma_stage(extra):
        for n in range(10):
            if n <= 3: a(f"s_add_u32 m0, s{sA}, {8192*n + extra}")
            elif n == 4:
                a(f"s_cmp_ge_u32 s{sW}, 5")
                a(f"s_cselect_b32 s{sCnt}, 37888, 0")
                a(f"s_add_u32 s{sCnt}, s{sCnt}, s{sA}")
                a(f"s_add_u32 m0, s{sCnt}, {32768 + extra}")
            elif n <= 8: a(f"s_add_u32 m0, s{sA}, {8192*n + 37888 + extra}")
            else:
                a(f"s_min_u32 s{sCnt}, s{sW}, 1")
                a(f"s_lshl_b32 s{sCnt}, s{sCnt}, 10")
                a(f"s_add_u32 m0, s{sCnt}, {72*1024 + 37888 + extra}")
            a("s_nop 0")
            a(f"buffer_load_dwordx4 v{vLane16}, s[{SRDK}:{SRDK+3}], m0 offen lds")
    st()
    dma_stage(0)
    st()
    dma_stage(37888)
    st()
    a(f"s_add_u32 s{sT1}, s{sT1}, s{sKH}")
    a(f"s_lshl_b32 s{sT2}, s{sT1}, 10")
    a(f"s_add_u32 s{sT2}, s{sT2}, {QFB0}")
    a(f"buffer_load_dwordx4 v[{QB}:{QB+3}], v{vLane16}, s[{SRD}:{SRD+3}], s{sT2} offen")
    a(f"s_lshl_b32 s{sT3}, s{sT1}, 7")
    a(f"s_add_u32 s{sT3}, s{sT3}, {QFB1}")
    a(f"buffer_load_dword v{QB+4}, v{vT3}, s[{SRD}:{SRD+3}], s{sT3} offen")
    a(f"s_lshl_b32 s{sT2}, s{sR}, 1")
    a(f"s_add_u32 s{sT2}, s{sT2}, s{sKH}")
    a(f"s_lshl_b32 s{sT2}, s{sT2}, 7")
    a(f"s_add_u32 s{sT2}, s{sT2}, {GATE}")
    a(f"v_lshlrev_b32 v{T+4}, 2, v{vT2}")
    a(f"buffer_load_dword v{vG}, v{T+4}, s[{SRD}:{SRD+3}], s{sT2} offen")
    a(f"v_mul_u32_u24 v{T+4}, 19, v{vT1}")
    a(f"v_add_u32 v{T+4}, v{T+4}, v{vT2}")
    a(f"v_lshlrev_b32 v{T+4}, 4, v{T+4}")
    a(f"v_cmp_gt_u32 vcc, 19, v{vT2}")
    a(f"v_mov_b32 v{T+5}, 0x7ff00000")
    a(f"v_cndmask_b32 v{T+4}, v{T+5}, v{T+4}, vcc")
    a(f"v_lshlrev_b32 v{T+6}, 3, v{vT2}")
    a(f"v_cmp_gt_u32 vcc, 19, v0")
    a("s_nop 1")
    a(f"v_cndmask_b32 v{T+6}, v{T+5}, v{T+6}, vcc")
    a(f"s_lshl_b32 s{sT2}, s{sT0}, 1")
    a(f"s_add_u32 s{sT2}, s{sT2}, s{sKH}")
    a(f"s_mul_i32 s{sT2}, s{sT2}, {8*1408}")
    a(f"s_add_u32 s{sT2}, s{sT2}, {KVP}")
    for p in range(8):
        b = KVPR + 10*p
        a(f"buffer_load_dwordx4 v[{b}:{b+3}], v{T+4}, s[{SRD}:{SRD+3}], s{sT2} offen")
        a(f"buffer_load_dwordx4 v[{b+4}:{b+7}], v{T+4}, s[{SRD}:{SRD+3}], s{sT2} offen offset:608")
        a(f"buffer_load_dwordx2 v[{b+8}:{b+9}], v{T+6}, s[{SRD}:{SRD+3}], s{sT2} offen offset:1216")
        if p < 7: a(f"s_add_u32 s{sT2}, s{sT2}, 1408")
    NV_AFTER_KMAX = 20 + 3 + 24
    a(f"s_mul_i32 s{sT2}, s{sKH}, {32*REC}")
    a(f"v_add_u32 v{vAK}, s{sT2}, v{vLane16}")
    a(f"v_lshlrev_b32 v{vAK1}, 2, v{vT2}")
    a(f"v_add_u32 v{vAK1}, s{sT2}, v{vAK1}")
    a(f"v_add_u32 v{vAK1}, 1024, v{vAK1}")
    a(f"v_mov_b32 v{T+4}, 4")
    a(f"v_cmp_gt_u32 vcc, 19, v{vT2}")
    a("s_nop 1")
    a(f"v_cndmask_b32 v{T+4}, v{T+4}, v{vT2}, vcc")
    a(f"v_subrev_u32 v{T+5}, 20, v{vT2}")
    a(f"v_cmp_gt_u32 vcc, 8, v{T+5}")
    a("s_nop 1")
    a(f"v_mov_b32 v{T+5}, 0")
    a(f"v_cndmask_b32 v{T+4}, v{T+4}, v{T+5}, vcc")
    a(f"v_lshlrev_b32 v{T+4}, 4, v{T+4}")
    a(f"v_mul_u32_u24 v{T+5}, 304, v{vT1}")
    a(f"v_add_u32 v{T+4}, v{T+4}, v{T+5}")
    a(f"v_add_u32 v{T+4}, s{sT2}, v{T+4}")
    a(f"v_add_u32 v{vAV}, 1152, v{T+4}")
    a(f"v_mov_b32 v{vIdx}, 0xdddddddd")
    for p in range(2):
        a(f"v_mov_b32 v{K1(p)+1}, 0x3f80")
    for r in range(4): a(f"v_mov_b32 v{V1(1)+r}, 0")
    for r in range(8,16): a(f"v_mov_b32 v{S[3]+r}, 0")
    st()
    a(f"s_waitcnt vmcnt({NV_AFTER_KMAX})")
    st()
    for reg in (T+2, T+3):
        for d in ("row_shr:1","row_shr:2","row_shr:4","row_shr:8"):
            a("s_nop 1")
            a(f"v_max_f32_dpp v{reg}, v{reg}, v{reg} {d} row_mask:0xf bank_mask:0xf bound_ctrl:0")
        a("s_nop 1")
        a(f"v_max_f32_dpp v{reg}, v{reg}, v{reg} row_bcast:15 row_mask:0xa bank_mask:0xf")
        a("s_nop 1")
        a(f"v_max_f32_dpp v{reg}, v{reg}, v{reg} row_bcast:31 row_mask:0xc bank_mask:0xf")
    a("s_nop 1")
    a(f"v_readlane_b32 s{sT2}, v{T+2}, 63")
    a(f"v_readlane_b32 s{sT3}, v{T+3}, 63")
    a("s_nop 1")
    a(f"v_mov_b32 v{T+2}, s{sT2}")
    a(f"v_add_f32 v{T+2}, s{sT3}, v{T+2}")
    for t in range(2):
        q = QA[t]
        a(f"v_mov_b32 v{T+4}, 0")
        a("s_nop 0")
        for r in range(5):
            a(f"v_dot2_f32_bf16 v{T+4}, v{q+r}, v{q+r}, v{T+4}")
            a("s_nop 2")
        a(f"v_mov_b32 v{T+5}, v{T+4}")
        a("s_nop 1")
        a(f"v_permlane32_swap_b32 v{T+4}, v{T+5}")
        a("s_nop 1")
        a(f"v_add_f32 v{T+4}, v{T+4}, v{T+5}")
        a(f"v_mul_f32 v{T+4}, v{T+4}, v{T+2}")
        a(f"v_sqrt_f32 v{T+4}, v{T+4}")
        a("s_nop 0")
        a(f"v_mov_b32 v{T+5}, 0x3f820000")
        a(f"v_mov_b32 v{T+6}, 0x42200000")
        a(f"v_fma_f32 v{T+4}, v{T+4}, v{T+5}, -v{T+6}")
        a(f"v_sub_f32 v{T+4}, 0, v{T+4}")
        a(f"v_cvt_pk_bf16_f32 v{T+5}, v{T+4}, 0")
        a(f"v_lshlrev_b32 v{vMM[t]}, 16, v{T+5}")
        a(f"v_cmp_eq_u32 vcc, 0, v{vT1}")
        a("s_nop 1")
        a(f"v_cndmask_b32 v{q+5}, 0, v{T+5}, vcc")
    a(f"s_mov_b32 s{sFlag}, 0")
    st()
    a(f"s_waitcnt vmcnt({10+3+24})")
    a("s_barrier")
    st()
    a(f"{L}_pass:")
    for t in range(2):
        for r in range(16): a(f"v_mov_b32 v{O[t]+r}, 0")
    a(f"ds_read_b128 v[{K(0)}:{K(0)+3}], v{vAK}")
    a(f"ds_read_b32 v{K1(0)}, v{vAK1}")
    a(f"ds_read_b128 v[{V0(0)}:{V0(0)+3}], v{vAV}")
    a(f"ds_read_b128 v[{V1(0)}:{V1(0)+3}], v{vAV} offset:608")
    a("s_waitcnt lgkmcnt(0)")
    a(f"v_mfma_f32_32x32x16_bf16 v[{S[0]}:{S[0]+15}], v[{K(0)}:{K(0)+3}], v[{QA[0]}:{QA[0]+3}], 0")
    a(f"v_mfma_f32_32x32x8bf16_1k v[{S[0]}:{S[0]+15}], v[{K1(0)}:{K1(0)+1}], v[{QA[0]+4}:{QA[0]+5}], v[{S[0]}:{S[0]+15}]")
    a("s_nop 7")
    a("s_nop 3")
    def tile(u):
        p = u//2; q = u%2
        Sc, Sn, Sp = S[u], S[(u+1)%4], S[(u-1)%4]
        pn = ((u+1)%4)//2; qn = (u+1)%2
        pp = ((u-1)%4)//2; qp = (u-1)%2
        ex = lambda r: a(f"v_exp_f32 v{Sc+r}, v{Sc+r}")
        off = (p+1)*REC
        x = 1-p
        if q == 1: a("s_waitcnt lgkmcnt(1)")
        a(f"v_mfma_f32_32x32x16_bf16 v[{Sn}:{Sn+15}], v[{K(pn)}:{K(pn)+3}], v[{QA[qn]}:{QA[qn]+3}], 0")
        ex(0)
        if q == 0: a(f"ds_read_b128 v[{K(x)}:{K(x)+3}], v{vAK} offset:{off}")
        ex(1)
        if q == 0: a(f"ds_read_b32 v{K1(x)}, v{vAK1} offset:{off}")
        ex(2)
        if q == 0: a(f"ds_read_b128 v[{V0(x)}:{V0(x)+3}], v{vAV} offset:{off}")
        ex(3)
        a(f"v_mfma_f32_32x32x8bf16_1k v[{Sn}:{Sn+15}], v[{K1(pn)}:{K1(pn)+1}], v[{QA[qn]+4}:{QA[qn]+5}], v[{Sn}:{Sn+15}]")
        for r in range(4,8): ex(r)
        a(f"v_smfmac_f32_32x32x32_bf16 v[{O[qp]}:{O[qp]+15}], v[{V1(pp)}:{V1(pp)+3}], v[{Sp+8}:{Sp+15}], v{vIdx}")
        ex(8)
        if q == 0: a(f"ds_read_b128 v[{V1(x)}:{V1(x)+3}], v{vAV} offset:{off+608}")
        for r in range(9,12): ex(r)
        a(f"v_smfmac_f32_32x32x32_bf16 v[{O[q]}:{O[q]+15}], v[{V0(p)}:{V0(p)+3}], v[{Sc}:{Sc+7}], v{vIdx}")
        for r in range(12,16): ex(r)
    def loop(lbl, iters):
        a(f"s_mov_b32 s{sCnt}, {iters}")
        a(".p2align 6")
        a(f"{lbl}:")
        for u in range(4): tile(u)
        a(f"v_add_u32 v{vAK}, {2*REC}, v{vAK}")
        a(f"v_add_u32 v{vAK1}, {2*REC}, v{vAK1}")
        a(f"v_add_u32 v{vAV}, {2*REC}, v{vAV}")
        a(f"s_sub_u32 s{sCnt}, s{sCnt}, 1")
        a(f"s_cmp_lg_u32 s{sCnt}, 0")
        a(f"s_cbranch_scc1 {lbl}")
    loop(f"{L}_loopA", 7)
    st()
    a(f"s_cmp_lg_u32 s{sFlag}, 0")
    a(f"s_cbranch_scc1 {L}_skipbar")
    a(f"s_waitcnt vmcnt({3+24})")
    a("s_barrier")
    a(f"{L}_skipbar:")
    st()
    loop(f"{L}_loopB", 9)
    st()
    a("s_nop 1")
    a(f"v_smfmac_f32_32x32x32_bf16 v[{O[1]}:{O[1]+15}], v[{V1(1)}:{V1(1)+3}], v[{S[3]+8}:{S[3]+15}], v{vIdx}")
    a("s_waitcnt lgkmcnt(0)")
    a("s_nop 7")
    a("s_nop 7")
    a(f"s_cmp_lg_u32 s{sFlag}, 0")
    a(f"s_cbranch_scc1 {L}_done")
    a(f"v_min_f32 v{T+4}, v{O[0]+10}, v{O[1]+10}")
    a(f"v_mov_b32 v{T+5}, 0x21800000")
    a(f"v_cmp_nge_f32 vcc, v{T+4}, v{T+5}")
    a("s_nop 3")
    a(f"s_and_b32 s{sT2}, vcc_lo, vcc_lo")
    a(f"s_cbranch_scc0 {L}_done")
    a(f"s_mov_b32 s{sFlag}, 1")
    a(f"v_subrev_u32 v{vAK}, {32*REC}, v{vAK}")
    a(f"v_subrev_u32 v{vAK1}, {32*REC}, v{vAK1}")
    a(f"v_subrev_u32 v{vAV}, {32*REC}, v{vAV}")
    a(f"v_mov_b32 v{T+8}, 0xff800000")
    a(f"v_mov_b32 v{T+9}, 0xff800000")
    a(f"v_mov_b32 v{QA[0]+5}, 0")
    a(f"v_mov_b32 v{QA[1]+5}, 0")
    a(f"v_mov_b32 v{T+10}, v{vAK}")
    a(f"v_mov_b32 v{T+11}, v{vAK1}")
    a(f"s_mov_b32 s{sCnt}, 32")
    a(f"{L}_fb:")
    a(f"ds_read_b128 v[{K(0)}:{K(0)+3}], v{T+10}")
    a(f"ds_read_b32 v{K1(0)}, v{T+11}")
    a("s_waitcnt lgkmcnt(0)")
    for t in range(2):
        a(f"v_mfma_f32_32x32x16_bf16 v[{S[t]}:{S[t]+15}], v[{K(0)}:{K(0)+3}], v[{QA[t]}:{QA[t]+3}], 0")
        a(f"v_mfma_f32_32x32x8bf16_1k v[{S[t]}:{S[t]+15}], v[{K1(0)}:{K1(0)+1}], v[{QA[t]+4}:{QA[t]+5}], v[{S[t]}:{S[t]+15}]")
    a("s_nop 7"); a("s_nop 7")
    for t in range(2):
        for r in range(0,16,2):
            a(f"v_max3_f32 v{T+8+t}, v{S[t]+r}, v{S[t]+r+1}, v{T+8+t}")
    a(f"v_add_u32 v{T+10}, {REC}, v{T+10}")
    a(f"v_add_u32 v{T+11}, {REC}, v{T+11}")
    a(f"s_sub_u32 s{sCnt}, s{sCnt}, 1")
    a(f"s_cmp_lg_u32 s{sCnt}, 0")
    a(f"s_cbranch_scc1 {L}_fb")
    for t in range(2):
        a(f"v_mov_b32 v{T+5}, v{T+8+t}")
        a("s_nop 1")
        a(f"v_permlane32_swap_b32 v{T+8+t}, v{T+5}")
        a("s_nop 1")
        a(f"v_max_f32 v{T+4}, v{T+8+t}, v{T+5}")
        a(f"v_sub_f32 v{T+4}, 0, v{T+4}")
        a(f"v_cvt_pk_bf16_f32 v{T+5}, v{T+4}, 0")
        a(f"v_lshlrev_b32 v{vMM[t]}, 16, v{T+5}")
        a(f"v_cmp_eq_u32 vcc, 0, v{vT1}")
        a("s_nop 1")
        a(f"v_cndmask_b32 v{QA[t]+5}, 0, v{T+5}, vcc")
    for r in range(4): a(f"v_mov_b32 v{V1(1)+r}, 0")
    for r in range(8,16): a(f"v_mov_b32 v{S[3]+r}, 0")
    a(f"s_branch {L}_pass")
    a(f"{L}_done:")
    st()
    a("s_barrier")
    a(f"s_mul_i32 s{sT2}, s{sW}, 3072")
    a(f"v_lshlrev_b32 v{T+4}, 2, v0")
    a(f"v_add_u32 v{T+4}, s{sT2}, v{T+4}")
    a(f"s_xor_b32 s{sT3}, s{sW}, 4")
    a(f"s_mul_i32 s{sT3}, s{sT3}, 3072")
    a(f"v_lshlrev_b32 v{T+5}, 2, v0")
    a(f"v_add_u32 v{T+5}, s{sT3}, v{T+5}")
    a(f"s_cmp_eq_u32 s{sKH}, 0")
    a(f"s_cbranch_scc1 {L}_kh0")
    for r in range(11): a(f"ds_write_b32 v{T+4}, v{O[0]+r} offset:{256*r}")
    a(f"ds_write_b32 v{T+4}, v{vMM[0]} offset:{256*11}")
    for r in range(11): a(f"v_mov_b32 v{O[0]+r}, v{O[1]+r}")
    a(f"v_mov_b32 v{vMM[0]}, v{vMM[1]}")
    a(f"s_branch {L}_sent")
    a(f"{L}_kh0:")
    for r in range(11): a(f"ds_write_b32 v{T+4}, v{O[1]+r} offset:{256*r}")
    a(f"ds_write_b32 v{T+4}, v{vMM[1]} offset:{256*11}")
    a(f"{L}_sent:")
    a("s_waitcnt vmcnt(0)")
    for stp in (4,2,1):
        for p in range(stp):
            for r in range(10):
                a(f"v_add_f32 v{KVPR+10*p+r}, v{KVPR+10*p+r}, v{KVPR+10*(p+stp)+r}")
    a(f"s_mul_i32 s{sT2}, s{sW}, 2560")
    a(f"v_lshlrev_b32 v{T+6}, 2, v0")
    a(f"v_add_u32 v{T+6}, s{sT2}, v{T+6}")
    a(f"s_xor_b32 s{sT3}, s{sW}, 4")
    a(f"s_mul_i32 s{sT3}, s{sT3}, 2560")
    a(f"v_lshlrev_b32 v{T+7}, 2, v0")
    a(f"v_add_u32 v{T+7}, s{sT3}, v{T+7}")
    for r in range(10): a(f"ds_write_b32 v{T+6}, v{KVPR+r} offset:{24576+256*r}")
    a("s_waitcnt lgkmcnt(0)")
    a("s_barrier")
    P = O[1]
    for r in range(11): a(f"ds_read_b32 v{P+r}, v{T+5} offset:{256*r}")
    a(f"ds_read_b32 v{P+11}, v{T+5} offset:{256*11}")
    PK = KVPR+10
    for r in range(10): a(f"ds_read_b32 v{PK+r}, v{T+7} offset:{24576+256*r}")
    a("s_waitcnt lgkmcnt(10)")
    a(f"v_min_f32 v{T+8}, v{vMM[0]}, v{P+11}")
    a(f"v_sub_f32 v{T+9}, v{T+8}, v{vMM[0]}")
    a(f"v_sub_f32 v{T+10}, v{T+8}, v{P+11}")
    a(f"v_exp_f32 v{T+9}, v{T+9}")
    a(f"v_exp_f32 v{T+10}, v{T+10}")
    a("s_nop 0")
    for r in range(11):
        a(f"v_mul_f32 v{O[0]+r}, v{O[0]+r}, v{T+9}")
        a(f"v_fmac_f32 v{O[0]+r}, v{P+r}, v{T+10}")
    def normalize_store(Ob, scale_reg, eps, part):
        a(f"v_mov_b32 v{T+12}, v{Ob+10}")
        a(f"v_mov_b32 v{T+13}, v{Ob+10}")
        a("s_nop 1")
        a(f"v_permlane32_swap_b32 v{T+12}, v{T+13}")
        a("s_nop 1")
        if eps:
            a(f"v_add_f32 v{T+12}, 0x358637bd, v{T+12}")
        a(f"v_rcp_f32 v{T+12}, v{T+12}")
        a("s_nop 0")
        a(f"v_mul_f32 v{T+12}, v{T+12}, v{scale_reg}")
        for r in range(10): a(f"v_mul_f32 v{Ob+r}, v{Ob+r}, v{T+12}")
        for r in range(0,10,2): a(f"v_cvt_pk_bf16_f32 v{Ob+r//2}, v{Ob+r}, v{Ob+r+1}")
    a(f"s_lshl_b32 s{sT2}, s{sKH}, 5")
    a(f"v_add_u32 v{T+14}, s{sT2}, v{vT2}")
    a(f"v_mul_u32_u24 v{T+14}, 144, v{T+14}")
    a(f"s_mul_i32 s{sT2}, s{sHL}, 36")
    a(f"s_add_u32 s{sT2}, s{sT2}, 49152")
    a(f"v_lshlrev_b32 v{T+15}, 3, v{vT1}")
    a(f"v_add_u32 v{T+14}, v{T+14}, v{T+15}")
    a(f"v_add_u32 v{T+14}, s{sT2}, v{T+14}")
    def stage_write(Ob, part):
        o = part*9216
        a(f"v_add_u32 v{T+15}, {o}, v{T+14}")
        a(f"ds_write2_b32 v{T+15}, v{Ob}, v{Ob+1} offset0:0 offset1:1")
        a(f"ds_write2_b32 v{T+15}, v{Ob+2}, v{Ob+3} offset0:4 offset1:5")
        a(f"s_mov_b64 s[{sT2}:{sT2+1}], exec")
        a(f"s_mov_b32 exec_hi, 0")
        a(f"ds_write_b32 v{T+15}, v{Ob+4} offset:32")
        a(f"s_mov_b64 exec, s[{sT2}:{sT2+1}]")
    normalize_store(O[0], vG, False, 0)
    stage_write(O[0], 0)
    a("s_waitcnt lgkmcnt(3)")
    for r in range(10): a(f"v_add_f32 v{KVPR+r}, v{KVPR+r}, v{PK+r}")
    AK = KVPR+20
    for r in range(0,8,2): a(f"v_cvt_pk_bf16_f32 v{AK+r//2}, v{KVPR+r}, v{KVPR+r+1}")
    a(f"v_cvt_pk_bf16_f32 v{AK+4}, v{KVPR+8}, v{KVPR+9}")
    a(f"v_mov_b32 v{AK+5}, 0")
    U = KVPR+30
    for r in range(5):
        a(f"v_lshlrev_b32 v{U+2*r}, 16, v{QB+r}")
        a(f"v_and_b32 v{U+2*r+1}, 0xffff0000, v{QB+r}")
    a(f"v_mov_b32 v{T+8}, 0x3fb8aa3b")
    a(f"v_mov_b32 v{T+9}, 0x358637bd")
    for r in range(10):
        a(f"v_mul_f32 v{U+10+r}, v{U+r}, v{T+8}")
    for r in range(10):
        a(f"v_exp_f32 v{U+10+r}, v{U+10+r} clamp")
    for r in range(10):
        a(f"v_max_f32 v{U+r}, 0, v{U+r}")
    for r in range(10):
        a(f"v_add_f32 v{U+10+r}, v{U+10+r}, v{T+9}")
    for r in range(10):
        a(f"v_add_f32 v{U+r}, v{U+r}, v{U+10+r}")
    BQ = KVPR+50
    for r in range(5): a(f"v_cvt_pk_bf16_f32 v{BQ+r}, v{U+2*r}, v{U+2*r+1}")
    a(f"v_cmp_eq_u32 vcc, 0, v{vT1}")
    a(f"v_mov_b32 v{BQ+5}, 0")
    a("s_nop 0")
    a(f"v_cndmask_b32 v{BQ+4}, 0, v{BQ+4}, vcc")
    a("s_nop 1")
    D = S[0]
    a(f"v_mfma_f32_32x32x16_bf16 v[{D}:{D+15}], v[{AK}:{AK+3}], v[{BQ}:{BQ+3}], 0")
    a(f"v_mfma_f32_32x32x8bf16_1k v[{D}:{D+15}], v[{AK+4}:{AK+5}], v[{BQ+4}:{BQ+5}], v[{D}:{D+15}]")
    a(f"v_sub_f32 v{vG}, 1.0, v{vG}")
    a("s_nop 7"); a("s_nop 7")
    normalize_store(D, vG, True, 1)
    stage_write(D, 1)
    a("s_waitcnt lgkmcnt(0)")
    a("s_barrier")
    st()
    a(f"s_and_b32 s{sT0}, s{sW}, 1")
    a(f"s_lshr_b32 s{sT1}, s{sW}, 1")
    a(f"s_and_b32 s{sT1}, s{sT1}, 1")
    a(f"s_lshr_b32 s{sKH}, s{sW}, 2")
    a(f"s_mul_i32 s{sT2}, s{sT1}, 9216")
    a(f"s_mul_i32 s{sT3}, s{sT0}, {32*144}")
    a(f"s_add_u32 s{sT2}, s{sT2}, s{sT3}")
    a(f"s_mul_i32 s{sT3}, s{sKH}, {3*32}")
    a(f"s_add_u32 s{sT2}, s{sT2}, s{sT3}")
    a(f"s_add_u32 s{sT2}, s{sT2}, 49152")
    a(f"v_mul_u32_u24 v{T+4}, 144, v{vT2}")
    a(f"v_lshlrev_b32 v{T+5}, 4, v{vT1}")
    a(f"v_add_u32 v{T+4}, v{T+4}, v{T+5}")
    a(f"v_add_u32 v{T+4}, s{sT2}, v{T+4}")
    for v in range(3):
        a(f"ds_read_b128 v[{S[1]+4*v}:{S[1]+4*v+3}], v{T+4} offset:{32*v}")
    a(f"s_lshl_b32 s{sT2}, s{sT1}, 6")
    a(f"s_lshl_b32 s{sT3}, s{sR}, 1")
    a(f"s_add_u32 s{sT2}, s{sT2}, s{sT3}")
    a(f"s_add_u32 s{sT2}, s{sT2}, s{sT0}")
    a(f"s_mul_i32 s{sT2}, s{sT2}, 72")
    a(f"s_mul_i32 s{sT3}, s{sJ}, 9")
    a(f"s_add_u32 s{sT2}, s{sT2}, s{sT3}")
    a(f"s_mul_i32 s{sT3}, s{sKH}, 6")
    a(f"s_add_u32 s{sT2}, s{sT2}, s{sT3}")
    a(f"s_lshl_b32 s{sT2}, s{sT2}, 9")
    a(f"s_add_u32 s{sT2}, s{sT2}, {OF}")
    a(f"v_lshlrev_b32 v{T+5}, 9, v{vT1}")
    a(f"v_lshlrev_b32 v{T+6}, 4, v{vT2}")
    a(f"v_add_u32 v{T+5}, v{T+5}, v{T+6}")
    a("s_waitcnt lgkmcnt(0)")
    a(f"buffer_store_dwordx4 v[{S[1]}:{S[1]+3}], v{T+5}, s[{SRD}:{SRD+3}], s{sT2} offen")
    a(f"s_cmp_eq_u32 s{sKH}, 0")
    a(f"s_cbranch_scc0 {L}_tail")
    a(f"buffer_store_dwordx4 v[{S[1]+4}:{S[1]+7}], v{T+5}, s[{SRD}:{SRD+3}], s{sT2} offen offset:1024")
    a(f"buffer_store_dwordx4 v[{S[1]+8}:{S[1]+11}], v{T+5}, s[{SRD}:{SRD+3}], s{sT2} offen offset:2048")
    a(f"s_branch {L}_fin")
    a(f"{L}_tail:")
    a(f"s_mov_b32 exec_hi, 0")
    a(f"buffer_store_dwordx4 v[{S[1]+4}:{S[1]+7}], v{T+5}, s[{SRD}:{SRD+3}], s{sT2} offen offset:1024")
    a(f"{L}_fin:")
    if stamp:
        st()
        a("s_memrealtime s[72:73]")
        a("s_mov_b64 exec, -1")
        a("s_waitcnt lgkmcnt(0)")
        n = nst[0]
        a(f"s_lshl_b32 s{sT2}, s2, 3")
        a(f"s_add_u32 s{sT2}, s{sT2}, s{sW}")
        a(f"s_lshl_b32 s{sT2}, s{sT2}, 6")
        a(f"s_add_u32 s{sT2}, s{sT2}, 0xF00000")
        a(f"v_mov_b32 v1, 0")
        for i in range(n):
            a(f"s_sub_u32 s{sT3}, s{40+2*i}, s40")
            a(f"v_mov_b32 v2, s{sT3}")
            a(f"buffer_store_dword v2, v1, s[{SRD}:{SRD+3}], s{sT2} offen offset:{4*i}")
        a(f"s_sub_u32 s{sT3}, s72, s70")
        a(f"v_mov_b32 v2, s{sT3}")
        a(f"buffer_store_dword v2, v1, s[{SRD}:{SRD+3}], s{sT2} offen offset:{60}")
        a(f"v_mov_b32 v2, s70")
        a(f"buffer_store_dword v2, v1, s[{SRD}:{SRD+3}], s{sT2} offen offset:{56}")
    a(f"{L}_end:")
    return kernel_header(name) + a.text() + kernel_footer(name, 256)

if __name__ == "__main__":
    print(gen_k2())
```

```python
from asmlib import *
import os
OS = 16384
WB = 65536
WS_ = 18432
LDS = WB + 4*WS_
OOB = 0x7ff00000
def gen_k3(name="outp_kernel", stamp=False):
    a = Asm(); L = name
    nst = [0]
    def st(i):
        if stamp:
            nst[0] = max(nst[0], i+1)
            a(f"s_memtime s[{64+2*i}:{65+2*i}]")
    sR, sJ, sW, sB, sC0, sCA = 12, 13, 14, 15, 16, 17
    SO, SWA, SWB, SOUT = 20, 24, 28, 32
    sB1024, sOo, sWo = 36, 37, 38
    sT0, sT1, sT2, sT3, sT4 = 42, 43, 44, 45, 46
    vN, vHH = 1, 2
    OFr = [8, 12, 16]
    WF = [20, 32, 44]
    ACC = 56
    aO = 104; aW = 105
    aW2 = 106
    vOo = 3; vWo = 107
    vT = 112
    NV = 128
    a("s_cmp_ge_u32 s2, 256"); a(f"s_cbranch_scc1 {L}_end")
    a("s_load_dwordx2 s[4:5], s[0:1], 32")
    a("s_load_dwordx2 s[6:7], s[0:1], 56")
    a("s_load_dwordx2 s[8:9], s[0:1], 72")
    a("s_load_dwordx2 s[10:11], s[0:1], 88")
    st(0)
    if stamp: a("s_memrealtime s[92:93]")
    a(f"s_and_b32 s{sT0}, s2, 7"); a(f"s_lshr_b32 s{sT1}, s2, 3"); a(f"s_and_b32 s{sT2}, s{sT1}, 3"); a(f"s_lshl_b32 s{sT2}, s{sT2}, 3")
    a(f"s_add_u32 s{sR}, s{sT0}, s{sT2}"); a(f"s_lshr_b32 s{sJ}, s2, 5")
    a(f"s_and_b32 s{sT2}, s{sT1}, 3"); a(f"s_lshl_b32 s{sT2}, s{sT2}, 1"); a(f"s_add_u32 s{sC0}, s{sJ}, s{sT2}")
    a(f"s_cmp_ge_u32 s{sC0}, 9"); a(f"s_cselect_b32 s{sT4}, 9, 0"); a(f"s_sub_u32 s{sC0}, s{sC0}, s{sT4}")
    a(f"v_lshrrev_b32 v{vT}, 6, v0"); a(f"v_and_b32 v0, 63, v0")
    a(f"v_readfirstlane_b32 s{sW}, v{vT}")
    a(f"v_and_b32 v{vN}, 31, v0"); a(f"v_lshrrev_b32 v{vHH}, 5, v0")
    a(f"v_lshlrev_b32 v{vOo}, 4, v0")
    a(f"s_and_b32 s{sB}, s{sW}, 3"); a(f"s_lshl_b32 s{sB1024}, s{sB}, 10")
    a("s_waitcnt lgkmcnt(0)")
    def srd(d, lo, hi, n):
        a(f"s_mov_b32 s{d}, s{lo}"); a(f"s_and_b32 s{d+1}, s{hi}, 0xffff"); a(f"s_mov_b32 s{d+2}, {n}"); a(f"s_mov_b32 s{d+3}, 0x20000")
    srd(SO, 10, 11, WS_USED)
    srd(SOUT, 8, 9, 2048*1152)
    def next_ca():
        a(f"s_add_u32 s{sCA}, s{sCA}, 1"); a(f"s_cmp_eq_u32 s{sCA}, 9"); a(f"s_cselect_b32 s{sCA}, 0, s{sCA}")
    sOb = 39
    a(f"s_lshl_b32 s{sT0}, s{sR}, 1"); a(f"s_mul_i32 s{sT0}, s{sT0}, {36*1024}"); a(f"s_add_u32 s{sOb}, s{sT0}, {OF}"); a(f"s_add_u32 s{sOb}, s{sOb}, s{sB1024}")
    def dma_o(c):
        s = c % 4
        a(f"s_lshl_b32 s{sOo}, s{sCA}, 12"); a(f"s_add_u32 s{sOo}, s{sOo}, s{sOb}")
        for m in range(4):
            p, rt = m >> 1, m & 1
            a(f"s_add_u32 m0, s{sB1024}, {s*OS + m*4096}"); a(f"s_add_u32 s{sT0}, s{sOo}, {(p*64+rt)*36*1024}")
            a(f"buffer_load_dwordx4 v{vOo}, s[{SO}:{SO+3}], s{sT0} offen lds")
    a(f"s_cmp_ge_u32 s{sW}, 4"); a(f"s_cbranch_scc1 {L}_b")
    a(f"s_mov_b32 s{sCA}, s{sC0}")
    for c in range(4):
        dma_o(c); next_ca()
    a(f"s_lshl_b32 s{sT0}, s{sW}, 12"); a(f"v_add_u32 v{aO}, s{sT0}, v{vOo}")
    a(f"v_lshrrev_b32 v{vT}, 4, v0"); a(f"v_and_b32 v{vT}, 1, v{vT}"); a(f"v_lshlrev_b32 v{vT}, 5, v{vT}")
    a(f"v_lshrrev_b32 v{vT+1}, 2, v0"); a(f"v_and_b32 v{vT+1}, 3, v{vT+1}"); a(f"v_lshlrev_b32 v{vT+2}, 3, v{vHH}"); a(f"v_add_u32 v{vT+1}, v{vT+1}, v{vT+2}")
    a(f"v_mul_u32_u24 v{vT+1}, 144, v{vT+1}"); a(f"v_and_b32 v{vT+2}, 3, v0"); a(f"v_lshlrev_b32 v{vT+2}, 3, v{vT+2}")
    a(f"v_add_u32 v{vT}, v{vT}, v{vT+1}"); a(f"v_add_u32 v{vT}, v{vT}, v{vT+2}")
    a(f"s_lshr_b32 s{sT0}, s{sW}, 1"); a(f"s_mul_i32 s{sT0}, s{sT0}, 9216"); a(f"s_add_u32 s{sT0}, s{sT0}, {WB}")
    a(f"v_add_u32 v{aW}, s{sT0}, v{vT}")
    a(f"v_add_u32 v{aW2}, {3*WS_}, v{aW}")
    for r in range(48): a(f"v_mov_b32 v{ACC+r}, 0")
    def reads(c, ks, st_):
        s = c % 4; out = [f"ds_read_b128 v[{OFr[st_]}:{OFr[st_]+3}], v{aO} offset:{s*OS + ks*1024}"]
        for T in range(3):
            for t in range(2):
                o = (16*ks+4*t)*144 + 64*T
                reg, off = (aW, s*WS_ + o) if s < 3 else (aW2, o)
                out.append(f"ds_read_b64_tr_b16 v[{WF[st_]+4*T+2*t}:{WF[st_]+4*T+2*t+1}], v{reg} offset:{off}")
        return out
    a("s_waitcnt vmcnt(12)"); a("s_barrier"); st(1)
    for x in reads(0,0,0): a(x)
    for x in reads(0,1,1): a(x)
    for s_ in range(36):
        c, ks = divmod(s_, 4); cur = s_ % 3
        if ks == 2:
            a("s_waitcnt lgkmcnt(0)")
            if c < 3: a(f"s_waitcnt vmcnt({4*(2-c)})")
            a("s_barrier"); st(2+c)
        elif ks != 3:
            a("s_waitcnt lgkmcnt(7)")
        rd = reads(*divmod(s_+2, 4), (s_+2) % 3) if s_+2 < 36 else []
        sched = [1,3,3]
        for T in range(3):
            for _ in range(sched[T]):
                if rd: a(rd.pop(0))
            d = ACC + 16*T
            a(f"v_mfma_f32_32x32x16_bf16 v[{d}:{d+15}], v[{WF[cur]+4*T}:{WF[cur]+4*T+3}], v[{OFr[cur]}:{OFr[cur]+3}], v[{d}:{d+15}]")
    a("s_nop 7"); a("s_nop 7")
    a(f"s_and_b32 s{sT0}, s{sW}, 1"); a(f"s_mul_i32 s{sT0}, s{sT0}, {36*256}")
    a(f"v_lshlrev_b32 v{vT}, 2, v0"); a(f"v_add_u32 v{vT}, s{sT0}, v{vT}")
    regs = list(range(ACC, ACC+32)) + list(range(ACC+32, ACC+36))
    a(f"s_cmp_ge_u32 s{sW}, 2"); a(f"s_cbranch_scc0 {L}_p0")
    for i, r in enumerate(regs): a(f"ds_write_b32 v{vT}, v{r} offset:{256*i}")
    a("s_waitcnt lgkmcnt(0)"); a("s_barrier")
    a(f"s_branch {L}_sync2")
    a(f"{L}_p0:")
    a("s_barrier")
    for i in range(36): a(f"ds_read_b32 v{8+i}, v{vT} offset:{256*i}")
    a("s_waitcnt lgkmcnt(0)")
    for i, r in enumerate(regs): a(f"v_add_f32 v{r}, v{r}, v{8+i}")
    a(f"s_and_b32 s{sT0}, s{sW}, 1"); a(f"s_mul_i32 s{sT0}, s{sT0}, {32*144}"); a(f"s_add_u32 s{sT0}, s{sT0}, 32768")
    a(f"v_mul_u32_u24 v{vT+1}, 144, v{vN}"); a(f"v_lshlrev_b32 v{vT+2}, 3, v{vHH}"); a(f"v_add_u32 v{vT+1}, v{vT+1}, v{vT+2}"); a(f"v_add_u32 v{vT+1}, s{sT0}, v{vT+1}")
    for T in range(3):
        for q in range(4 if T < 2 else 1):
            d = ACC + 16*T + 4*q
            a(f"v_cvt_pk_bf16_f32 v{d}, v{d}, v{d+1}"); a(f"v_cvt_pk_bf16_f32 v{d+1}, v{d+2}, v{d+3}")
            a(f"ds_write_b64 v{vT+1}, v[{d}:{d+1}] offset:{64*T+16*q}")
    a("s_waitcnt lgkmcnt(0)")
    a(f"{L}_sync2:")
    a("s_barrier")
    a(f"s_branch {L}_out")
    a(f"{L}_b:")
    srd(SWA, 4, 5, 576*1152); srd(SWB, 6, 7, 576*1152)
    def w_off(dst, i_s):
        a(f"s_lshl_b32 s{sT2}, s{i_s}, 6"); a(f"v_add_u32 v{vT+7}, s{sT2}, v0")
        a(f"v_mul_u32_u24 v{vT+8}, 7282, v{vT+7}"); a(f"v_lshrrev_b32 v{vT+8}, 16, v{vT+8}")
        a(f"v_mul_u32_u24 v{vT+9}, 9, v{vT+8}"); a(f"v_sub_u32 v{vT+9}, v{vT+7}, v{vT+9}")
        a(f"v_lshlrev_b32 v{vT+9}, 4, v{vT+9}"); a(f"v_mul_u32_u24 v{vT+8}, 1152, v{vT+8}"); a(f"v_add_u32 v{vT+9}, v{vT+9}, v{vT+8}")
        a(f"s_mul_i32 s{sT2}, s{sJ}, 144"); a(f"v_add_u32 v{dst}, s{sT2}, v{vT+9}")
    a(f"s_mov_b32 s{sT3}, s{sB}"); w_off(vWo, sT3)
    a(f"s_add_u32 s{sT3}, s{sB}, 4"); w_off(vWo+1, sT3)
    a(f"s_mov_b32 s{sT3}, 8"); w_off(vWo+2, sT3)
    a(f"s_and_b32 s{sT0}, s{sB}, 1"); a(f"s_cmp_eq_u32 s{sT0}, 0")
    for i in range(3): a(f"s_cselect_b32 s{48+i}, s{SWA+i}, s{SWB+i}")
    a("s_mov_b32 s51, 0x20000")
    s5m = 40
    a(f"s_mul_i32 s{s5m}, s{sT0}, 9216"); a(f"s_add_u32 s{s5m}, s{s5m}, {WB + 8192}")
    def dma_w(c):
        s = c % 4
        a(f"s_mul_i32 s{sWo}, s{sCA}, {64*1152}")
        for (srd_, po) in ((SWA, 0), (SWB, 9216)):
            for m in range(2):
                a(f"s_add_u32 m0, s{sB1024}, {WB + s*WS_ + po + 4096*m}"); a("s_nop 0")
                a(f"buffer_load_dwordx4 v{vWo+m}, s[{srd_}:{srd_+3}], s{sWo} offen lds")
        a(f"s_add_u32 m0, s{s5m}, {s*WS_}"); a("s_nop 0")
        a(f"buffer_load_dwordx4 v{vWo+2}, s[48:51], s{sWo} offen lds")
    a(f"s_mov_b32 s{sCA}, s{sC0}")
    for c in range(4):
        dma_w(c); next_ca()
    a("s_waitcnt vmcnt(15)"); a("s_barrier"); st(1)
    waits = {0:10, 1:14, 2:18, 3:18, 4:18, 5:18, 6:9, 7:0}
    for c in range(9):
        if c < 8: a(f"s_waitcnt vmcnt({waits[c]})")
        a("s_barrier"); st(2+c)
        if c+4 <= 8:
            dma_o(c+4); dma_w(c+4); next_ca()
    a("s_barrier")
    a("s_barrier")
    a(f"{L}_out:")
    st(11)
    def out_chunk(base_s_or_const):
        a(f"v_mul_u32_u24 v{vT+8}, 7282, v{vT+7}"); a(f"v_lshrrev_b32 v{vT+8}, 16, v{vT+8}")
        a(f"v_mul_u32_u24 v{vT+9}, 9, v{vT+8}"); a(f"v_sub_u32 v{vT+9}, v{vT+7}, v{vT+9}")
        a(f"v_lshlrev_b32 v{vT+9}, 4, v{vT+9}")
        a(f"v_mul_u32_u24 v{vT+10}, 144, v{vT+8}"); a(f"v_add_u32 v{vT+10}, v{vT+10}, v{vT+9}"); a(f"v_add_u32 v{vT+10}, 32768, v{vT+10}")
        a(f"ds_read_b128 v[8:11], v{vT+10}")
        a(f"v_mul_u32_u24 v{vT+8}, 1152, v{vT+8}"); a(f"v_add_u32 v{vT+9}, v{vT+9}, v{vT+8}")
        a("s_waitcnt lgkmcnt(0)")
        a(f"buffer_store_dwordx4 v[8:11], v{vT+9}, s[{SOUT}:{SOUT+3}], s{sT4} offen")
    a(f"s_mul_i32 s{sT4}, s{sR}, {64*1152}"); a(f"s_mul_i32 s{sT0}, s{sJ}, 144"); a(f"s_add_u32 s{sT4}, s{sT4}, s{sT0}")
    a(f"s_lshl_b32 s{sT0}, s{sW}, 6"); a(f"v_add_u32 v{vT+7}, s{sT0}, v0")
    out_chunk(None)
    a(f"s_cmp_eq_u32 s{sW}, 0"); a(f"s_cbranch_scc0 {L}_fin")
    a(f"v_add_u32 v{vT+7}, 512, v0")
    a("s_nop 1")
    out_chunk(None)
    a(f"{L}_fin:")
    if stamp:
        st(12)
        a("s_memrealtime s[94:95]"); a("s_mov_b64 exec, -1"); a("s_waitcnt lgkmcnt(0)")
        a(f"s_lshl_b32 s{sT2}, s2, 3"); a(f"s_add_u32 s{sT2}, s{sT2}, s{sW}"); a(f"s_lshl_b32 s{sT2}, s{sT2}, 6"); a(f"s_add_u32 s{sT2}, s{sT2}, 0xF80000")
        a(f"v_mov_b32 v1, 0")
        for i in range(nst[0]):
            a(f"s_sub_u32 s{sT3}, s{64+2*i}, s64"); a(f"v_mov_b32 v2, s{sT3}")
            a(f"buffer_store_dword v2, v1, s[{SO}:{SO+3}], s{sT2} offen offset:{4*i}")
        a(f"s_sub_u32 s{sT3}, s94, s92"); a(f"v_mov_b32 v2, s{sT3}")
        a(f"buffer_store_dword v2, v1, s[{SO}:{SO+3}], s{sT2} offen offset:60")
        a(f"v_mov_b32 v2, s92")
        a(f"buffer_store_dword v2, v1, s[{SO}:{SO+3}], s{sT2} offen offset:56")
    a(f"{L}_end:")
    return kernel_header(name) + a.text() + kernel_footer(name, NV)
```

```python
import sys
from asmlib import *
import k2
HDR = open('gated_mix__grouped_kv_mqa__linear_attn_block__prompt.s.ref').read().split('; Override launch')[0]
def build(which, stamp=False):
    launches = []
    body = ""
    if 'k1' in which:
        import k1
        launches.append("; @launch kernel=proj_kernel grid=(256,1,1) block=(512,1,1) lds=%d" % k1.LDS)
        body += k1.gen_k1(stamp=stamp)
    if 'k2' in which:
        launches.append("; @launch kernel=attn_kernel grid=(256,1,1) block=(512,1,1) lds=%d" % k2.LDS)
        body += k2.gen_k2(stamp=stamp)
    if 'k3' in which:
        import k3
        launches.append("; @launch kernel=outp_kernel grid=(256,1,1) block=(512,1,1) lds=%d" % k3.LDS)
        body += k3.gen_k3(stamp=stamp)
    if 'dup' in which: launches = launches + launches[-1:]
    return HDR + "\n".join(launches) + '\n.amdgcn_target "amdgcn-amd-amdhsa--gfx950"\n' + body
if __name__ == "__main__":
    which = sys.argv[1].split(',')
    open(sys.argv[2],'w').write(build(which, len(sys.argv)>3))
```

```python
from asmlib import *
import os, struct, math
EXP = os.environ.get("K1EXP","")
XS = 16384
WB = 65536
WS_ = 20480
LDS = 147456
def f2u(x): return struct.unpack('<I', struct.pack('<f', x))[0]
CSCALE = f2u(1.4426950408889634/math.sqrt(18.0))
LOG2E = f2u(1.4426950408889634)
EPS6 = f2u(1e-6)
OOB = 0x7ff00000

def gen_k1(name="proj_kernel", stamp=False):
    a = Asm(); L = name
    nst = [0]
    def st(i):
        if stamp:
            nst[0] = max(nst[0], i+1)
            a(f"s_memtime s[{64+2*i}:{65+2*i}]")
    sRB, sCG, sW, sB, sC0, sCA = 12, 13, 14, 15, 16, 17
    SX, SWm, S9, SWS = 20, 24, 28, 32
    sWstr, s9str, sXo, sWo, s9o, sB1024 = 36, 37, 38, 39, 40, 41
    sT0, sT1, sT2, sT3, sT4, sT5 = 42, 43, 44, 45, 46, 47
    sColA, sRS, sKV = 48, 49, 50
    vN, vHH = 1, 2
    XF = [8, 16, 24]
    WF = [32, 44, 56]
    ACC = 68
    A4 = ACC + 64
    aX = 148; aW0 = 152; aW1 = 156; aT4 = 160
    vXo = 3; vWo = 4; vW9 = 148
    vT = 176
    NV = 200
    a(f"s_cmp_ge_u32 s2, 256")
    a(f"s_cbranch_scc1 {L}_end")
    a("s_load_dwordx4 s[4:7], s[0:1], 0")
    a("s_load_dwordx4 s[8:11], s[0:1], 16")
    a("s_load_dwordx2 s[52:53], s[0:1], 48")
    a("s_load_dwordx2 s[54:55], s[0:1], 64")
    a("s_load_dwordx2 s[56:57], s[0:1], 88")
    st(0)
    if stamp: a("s_memrealtime s[92:93]")
    a(f"s_and_b32 s{sT0}, s2, 7"); a(f"s_lshr_b32 s{sT1}, s2, 3")
    a(f"s_and_b32 s{sT2}, s{sT0}, 1"); a(f"s_lshl_b32 s{sT2}, s{sT2}, 3")
    a(f"s_and_b32 s{sT3}, s{sT1}, 7"); a(f"s_add_u32 s{sRB}, s{sT2}, s{sT3}")
    a(f"s_lshr_b32 s{sT2}, s{sT0}, 1"); a(f"s_lshl_b32 s{sT2}, s{sT2}, 2")
    a(f"s_lshr_b32 s{sT4}, s{sT1}, 3"); a(f"s_add_u32 s{sCG}, s{sT2}, s{sT4}")
    a(f"s_lshl_b32 s{sT4}, s{sT4}, 1"); a(f"s_add_u32 s{sC0}, s{sT3}, s{sT4}")
    a(f"s_cmp_ge_u32 s{sC0}, 9"); a(f"s_cselect_b32 s{sT4}, 9, 0"); a(f"s_sub_u32 s{sC0}, s{sC0}, s{sT4}")
    if "norot" in EXP: a(f"s_mov_b32 s{sC0}, 0")
    if "rot2" in EXP:
        a(f"s_and_b32 s{sC0}, s{sC0}, 1")
    a(f"v_lshrrev_b32 v{vT}, 6, v0"); a(f"v_and_b32 v0, 63, v0")
    a(f"v_readfirstlane_b32 s{sW}, v{vT}")
    a(f"v_and_b32 v{vN}, 31, v0"); a(f"v_lshrrev_b32 v{vHH}, 5, v0")
    a("s_nop 0")
    a(f"s_and_b32 s{sB}, s{sW}, 3"); a(f"s_lshl_b32 s{sB1024}, s{sB}, 10")
    a(f"v_lshrrev_b32 v{vT+7}, 3, v0")
    a(f"s_lshl_b32 s{sT0}, s{sRB}, 7"); a(f"s_lshl_b32 s{sT1}, s{sB}, 3"); a(f"s_add_u32 s{sT0}, s{sT0}, s{sT1}")
    a(f"v_add_u32 v{vT+7}, s{sT0}, v{vT+7}")
    a(f"v_mul_u32_u24 v{vT+7}, 1152, v{vT+7}")
    a(f"s_and_b32 s{sT0}, s{sB}, 1"); a(f"s_lshl_b32 s{sT0}, s{sT0}, 2")
    a(f"v_lshrrev_b32 v{vT+8}, 4, v0"); a(f"v_add_u32 v{vT+8}, s{sT0}, v{vT+8}"); a(f"v_and_b32 v{vT+8}, 7, v{vT+8}")
    a(f"v_and_b32 v{vT+9}, 7, v0"); a(f"v_xor_b32 v{vT+8}, v{vT+8}, v{vT+9}"); a(f"v_lshlrev_b32 v{vT+8}, 4, v{vT+8}")
    a(f"v_add_u32 v{vXo}, v{vT+7}, v{vT+8}")
    a("s_waitcnt lgkmcnt(0)")
    def srd(d, lo, hi, n):
        a(f"s_mov_b32 s{d}, s{lo}"); a(f"s_and_b32 s{d+1}, s{hi}, 0xffff"); a(f"s_mov_b32 s{d+2}, {n}"); a(f"s_mov_b32 s{d+3}, 0x20000")
    srd(SX, 4, 5, 2048*1152)
    a(f"s_cmp_ge_u32 s{sCG}, 8"); a(f"s_cselect_b32 s{sKV}, 1, 0")
    a(f"s_cmp_ge_u32 s{sW}, 4"); a(f"s_cbranch_scc1 {L}_bsetup")
    def next_ca():
        a(f"s_add_u32 s{sCA}, s{sCA}, 1"); a(f"s_cmp_eq_u32 s{sCA}, 9"); a(f"s_cselect_b32 s{sCA}, 0, s{sCA}")
    def dma_x(c):
        s = c % 4
        a(f"s_lshl_b32 s{sXo}, s{sCA}, 7")
        for m in range(4):
            a(f"s_add_u32 m0, s{sB1024}, {s*XS + 4096*m}"); a(f"s_add_u32 s{sT0}, s{sXo}, {36864*m}")
            a(f"buffer_load_dwordx4 v{vXo}, s[{SX}:{SX+3}], s{sT0} offen lds")
    a(f"s_mov_b32 s{sCA}, s{sC0}")
    dma_x(0)
    if "st2" in EXP: st(11)
    srd(SWS, 56, 57, WS_USED)
    a(f"v_lshrrev_b32 v{vT}, 1, v{vN}"); a(f"v_and_b32 v{vT}, 7, v{vT}"); a(f"v_xor_b32 v{vT}, v{vT}, v{vHH}")
    a(f"v_lshlrev_b32 v{vT}, 4, v{vT}"); a(f"v_lshlrev_b32 v{vT+1}, 7, v{vN}"); a(f"v_add_u32 v{vT}, v{vT}, v{vT+1}")
    a(f"s_and_b32 s{sT0}, s{sW}, 1"); a(f"s_lshl_b32 s{sT0}, s{sT0}, 13")
    a(f"v_add_u32 v{aX}, s{sT0}, v{vT}")
    for ks in range(1,4): a(f"v_xor_b32 v{aX+ks}, {ks<<5}, v{aX}")
    vG2, vR, vC4, vK, vU = vT+2, vT+3, vT+4, vT+5, vT+6
    a(f"v_lshrrev_b32 v{vG2}, 4, v0"); a(f"v_and_b32 v{vG2}, 1, v{vG2}")
    a(f"v_lshrrev_b32 v{vR}, 2, v0"); a(f"v_and_b32 v{vR}, 3, v{vR}"); a(f"v_and_b32 v{vC4}, 3, v0")
    a(f"v_lshlrev_b32 v{vK}, 3, v{vHH}"); a(f"v_add_u32 v{vK}, v{vK}, v{vR}")
    a(f"v_add_u32 v{vU}, v{vG2}, v{vR}"); a(f"v_lshlrev_b32 v{vU}, 1, v{vU}")
    a(f"v_lshrrev_b32 v{vT+7}, 1, v{vC4}"); a(f"v_add_u32 v{vU}, v{vU}, v{vT+7}")
    a(f"v_mul_u32_u24 v{vT+7}, 288, v{vK}")
    a(f"v_and_b32 v{vT+8}, 1, v{vC4}"); a(f"v_lshlrev_b32 v{vT+8}, 3, v{vT+8}")
    a(f"v_add_u32 v{vT+7}, v{vT+7}, v{vT+8}"); a(f"v_add_u32 v{vT+7}, {WB}, v{vT+7}")
    a(f"s_lshr_b32 s{sT0}, s{sW}, 1"); a(f"s_lshl_b32 s{sT0}, s{sT0}, 3")
    for ib in range(2):
        for t in range(2):
            a(f"s_add_u32 s{sT1}, s{sT0}, {4*ib+8*t}")
            a(f"v_add_u32 v{vT+8}, s{sT1}, v{vU}"); a(f"v_and_b32 v{vT+8}, 15, v{vT+8}"); a(f"v_lshlrev_b32 v{vT+8}, 4, v{vT+8}")
            a(f"v_add_u32 v{aW0+2*ib+t}, v{vT+7}, v{vT+8}")
            a(f"v_add_u32 v{aW1+2*ib+t}, {3*WS_}, v{aW0+2*ib+t}")
    a(f"v_cmp_eq_u32 vcc, 0, v{vG2}")
    a(f"v_mov_b32 v{vT+7}, 32"); a(f"v_mov_b32 v{vT+8}, 288"); a(f"v_cndmask_b32 v{vT+7}, v{vT+7}, v{vT+8}, vcc")
    a(f"v_mov_b32 v{vT+8}, {WB+18432}"); a(f"v_mov_b32 v{vT+9}, {WB+256}"); a(f"v_cndmask_b32 v{vT+8}, v{vT+8}, v{vT+9}, vcc")
    a(f"v_lshlrev_b32 v{vT+9}, 3, v{vC4}"); a(f"v_add_u32 v{vT+8}, v{vT+8}, v{vT+9}")
    a(f"v_mul_lo_u32 v{vT+9}, v{vK}, v{vT+7}"); a(f"v_add_u32 v{vT+8}, v{vT+8}, v{vT+9}")
    a(f"v_lshlrev_b32 v{vT+7}, 2, v{vT+7}")
    for i in range(8):
        ks, t = divmod(i, 2)
        a(f"v_mad_u32_u24 v{aT4+i}, v{vT+7}, {4*ks+t}, v{vT+8}")
        a(f"v_add_u32 v{aT4+8+i}, {3*WS_}, v{aT4+i}")
    for r in range(80): a(f"v_mov_b32 v{ACC+r}, 0")
    def reads(c, ks, st_):
        s = c % 4; out = []
        for ia in range(2):
            out.append(f"ds_read_b128 v[{XF[st_]+4*ia}:{XF[st_]+4*ia+3}], v{aX+ks} offset:{s*XS + ia*4096}")
        for ib in range(2):
            for t in range(2):
                if s < 3: reg, off = aW0+2*ib+t, s*WS_ + (16*ks+4*t)*288
                else: reg, off = aW1+2*ib+t, (16*ks+4*t)*288
                out.append(f"ds_read_b64_tr_b16 v[{WF[st_]+4*ib+2*t}:{WF[st_]+4*ib+2*t+1}], v{reg} offset:{off}")
        for t in range(2):
            if s < 3: reg, off = aT4+2*ks+t, s*WS_
            else: reg, off = aT4+8+2*ks+t, 0
            out.append(f"ds_read_b64_tr_b16 v[{WF[st_]+8+2*t}:{WF[st_]+8+2*t+1}], v{reg} offset:{off}")
        return out
    def a_main(kv, ch):
        a("s_waitcnt vmcnt(0)")
        if "st2" in EXP: st(12)
        a("s_barrier"); st(1)
        for x in reads(0,0,0): a(x)
        for x in reads(0,1,1): a(x)
        for s_ in range(36):
            c, ks = divmod(s_, 4); cur = s_ % 3
            if ks == 2:
                a("s_waitcnt lgkmcnt(0)")
                a("s_barrier"); st(2+c)
            elif ks != 3:
                a("s_waitcnt lgkmcnt(8)")
            rd = reads(*divmod(s_+2, 4), (s_+2) % 3) if s_+2 < 36 else []
            mf = []
            for ia in range(2):
                for ib in range(2):
                    mf.append((ACC + 16*(2*ia+ib), XF[cur]+4*ia, WF[cur]+4*ib))
            mf.append((A4, XF[cur]+4*ch, WF[cur]+8))
            sched = [0,2,2,2,2]
            for i,(d,xr,wr) in enumerate(mf):
                for _ in range(sched[i]):
                    if rd: a(rd.pop(0))
                xa = f"v[{xr}:{xr+3}]"; wb = f"v[{wr}:{wr+3}]"
                if kv: a(f"v_mfma_f32_32x32x16_bf16 v[{d}:{d+15}], {xa}, {wb}, v[{d}:{d+15}]")
                else:  a(f"v_mfma_f32_32x32x16_bf16 v[{d}:{d+15}], {wb}, {xa}, v[{d}:{d+15}]")
            for x in rd: a(x)
    def phi(regs, tmp):
        a(f"v_mov_b32 v{vT+10}, {LOG2E}"); a(f"v_mov_b32 v{vT+11}, {EPS6}")
        for i,r in enumerate(regs): a(f"v_mul_f32 v{tmp+i}, v{r}, v{vT+10}")
        for i,r in enumerate(regs): a(f"v_exp_f32 v{tmp+i}, v{tmp+i} clamp")
        for i,r in enumerate(regs): a(f"v_max_f32 v{r}, 0, v{r}")
        for i,r in enumerate(regs): a(f"v_add_f32 v{tmp+i}, v{tmp+i}, v{vT+11}")
        for i,r in enumerate(regs): a(f"v_add_f32 v{r}, v{r}, v{tmp+i}")
    def kappa(dst):
        a(f"v_and_b32 v{dst}, 0x13, v{vN}")
        a(f"v_and_b32 v{vT+12}, 4, v{vN}"); a(f"v_lshlrev_b32 v{vT+12}, 1, v{vT+12}"); a(f"v_or_b32 v{dst}, v{dst}, v{vT+12}")
        a(f"v_and_b32 v{vT+12}, 8, v{vN}"); a(f"v_lshrrev_b32 v{vT+12}, 1, v{vT+12}"); a(f"v_or_b32 v{dst}, v{dst}, v{vT+12}")
    def wave_max_store(reg, arr_off):
        for d in ("row_shr:1","row_shr:2","row_shr:4","row_shr:8"):
            a("s_nop 1"); a(f"v_max_f32_dpp v{reg}, v{reg}, v{reg} {d} row_mask:0xf bank_mask:0xf bound_ctrl:0")
        a("s_nop 1"); a(f"v_max_f32_dpp v{reg}, v{reg}, v{reg} row_bcast:15 row_mask:0xa bank_mask:0xf")
        a("s_nop 1"); a(f"v_max_f32_dpp v{reg}, v{reg}, v{reg} row_bcast:31 row_mask:0xc bank_mask:0xf")
        a(f"s_lshl_b32 s{sT0}, s{sT4}, 2"); a(f"s_add_u32 s{sT0}, s{sT0}, {KMAX+arr_off}")
        a(f"v_mov_b32 v{vT+13}, {OOB}"); a(f"v_mov_b32 v{vT+14}, 0"); a(f"v_cmp_eq_u32 vcc, 63, v0"); a("s_nop 1")
        a(f"v_cndmask_b32 v{vT+13}, v{vT+13}, v{vT+14}, vcc")
        a(f"buffer_store_dword v{reg}, v{vT+13}, s[{SWS}:{SWS+3}], s{sT0} offen")
    a(f"s_lshr_b32 s{sT5}, s{sW}, 1")
    a(f"s_cmp_eq_u32 s{sKV}, 0"); a(f"s_cbranch_scc0 {L}_a_kv")
    a(f"s_cmp_eq_u32 s{sT5}, 0"); a(f"s_cbranch_scc0 {L}_a_q1")
    a_main(False, 0); a(f"s_branch {L}_a_qepi")
    a(f"{L}_a_q1:"); a_main(False, 1)
    a(f"{L}_a_qepi:")
    a("s_nop 7"); a("s_nop 7")
    a(f"s_and_b32 s{sT0}, s{sW}, 1"); a(f"s_lshl_b32 s{sT1}, s{sT0}, 1"); a(f"s_add_u32 s{sT3}, s{sT1}, s{sT5}")
    a(f"s_lshl_b32 s{sT4}, s{sRB}, 2"); a(f"s_add_u32 s{sT4}, s{sT4}, s{sT3}")
    a(f"s_mul_i32 s{sT0}, s{sT0}, {64*328}"); a(f"s_lshl_b32 s{sT1}, s{sT5}, 7"); a(f"s_add_u32 s{sT0}, s{sT0}, s{sT1}")
    a(f"v_mul_u32_u24 v{vT}, 328, v{vN}"); a(f"v_lshlrev_b32 v{vT+1}, 3, v{vHH}"); a(f"v_add_u32 v{vT}, v{vT}, v{vT+1}")
    a(f"v_add_u32 v{vT+1}, s{sT0}, v{vT}")
    for ia in range(2):
        for ib in range(2):
            d = ACC + 16*(2*ia+ib)
            for q in range(4):
                a(f"v_cvt_pk_bf16_f32 v{d+4*q}, v{d+4*q}, v{d+4*q+1}")
                a(f"v_cvt_pk_bf16_f32 v{d+4*q+1}, v{d+4*q+2}, v{d+4*q+3}")
                a(f"ds_write_b64 v{vT+1}, v[{d+4*q}:{d+4*q+1}] offset:{ia*32*328 + ib*64 + q*16}")
    a(f"s_mul_i32 s{sT0}, s{sT3}, {32*328}"); a(f"s_add_u32 s{sT0}, s{sT0}, 256"); a(f"v_add_u32 v{vT+1}, s{sT0}, v{vT}")
    for q in range(2):
        a(f"v_cvt_pk_bf16_f32 v{8+2*q}, v{A4+4*q}, v{A4+4*q+1}"); a(f"v_cvt_pk_bf16_f32 v{9+2*q}, v{A4+4*q+2}, v{A4+4*q+3}")
        a(f"ds_write_b64 v{vT+1}, v[{8+2*q}:{9+2*q}] offset:{q*16}")
    a(f"s_cmp_eq_u32 s{sCG}, 0"); a(f"s_cbranch_scc0 {L}_notalpha")
    a(f"v_mov_b32 v{vT+2}, {CSCALE}")
    for r in range(8,16): a(f"v_mul_f32 v{A4+r}, v{A4+r}, v{vT+2}")
    for i in range(4): a(f"v_cvt_pk_bf16_f32 v{12+i}, v{A4+8+2*i}, v{A4+9+2*i}")
    kappa(vT+3)
    a(f"v_lshlrev_b32 v{vT+4}, 5, v{vHH}"); a(f"v_add_u32 v{vT+3}, v{vT+3}, v{vT+4}"); a(f"v_lshlrev_b32 v{vT+3}, 4, v{vT+3}")
    a(f"s_mul_i32 s{sT0}, s{sT4}, {REC}"); a(f"s_add_u32 s{sT0}, s{sT0}, {KIMG}")
    a(f"buffer_store_dwordx4 v[12:15], v{vT+3}, s[{SWS}:{SWS+3}], s{sT0} offen")
    a(f"v_mov_b32 v{vT+5}, 0"); a("s_nop 0")
    for i in range(4):
        a(f"v_dot2_f32_bf16 v{vT+5}, v{12+i}, v{12+i}, v{vT+5}"); a("s_nop 2")
    a(f"v_mov_b32 v{vT+6}, v{vT+5}"); a("s_nop 1"); a(f"v_permlane32_swap_b32 v{vT+5}, v{vT+6}"); a("s_nop 1")
    a(f"v_add_f32 v{vT+5}, v{vT+5}, v{vT+6}")
    wave_max_store(vT+5, 0)
    a(f"{L}_notalpha:")
    a(f"s_cmp_eq_u32 s{sCG}, 1"); a(f"s_cbranch_scc0 {L}_notbeta")
    a(f"v_mov_b32 v{vT+2}, {CSCALE}")
    for r in range(8,10): a(f"v_mul_f32 v{A4+r}, v{A4+r}, v{vT+2}")
    a(f"v_cvt_pk_bf16_f32 v12, v{A4+8}, v{A4+9}")
    kappa(vT+3)
    a(f"v_lshlrev_b32 v{vT+3}, 2, v{vT+3}")
    a(f"v_mov_b32 v{vT+4}, {OOB}"); a(f"v_cmp_eq_u32 vcc, 0, v{vHH}"); a("s_nop 1")
    a(f"v_cndmask_b32 v{vT+3}, v{vT+4}, v{vT+3}, vcc"); a(f"v_cndmask_b32 v12, 0, v12, vcc")
    a(f"s_mul_i32 s{sT0}, s{sT4}, {REC}"); a(f"s_add_u32 s{sT0}, s{sT0}, {KIMG+1024}")
    a(f"buffer_store_dword v12, v{vT+3}, s[{SWS}:{SWS+3}], s{sT0} offen")
    a(f"v_mov_b32 v{vT+5}, 0"); a("s_nop 0")
    a(f"v_dot2_f32_bf16 v{vT+5}, v12, v12, v{vT+5}"); a("s_nop 2")
    wave_max_store(vT+5, 256)
    a(f"{L}_notbeta:")
    a(f"s_cmp_eq_u32 s{sCG}, 2"); a(f"s_cbranch_scc0 {L}_qout")
    a(f"v_add_f32 v{vT+5}, v{A4+8}, v{A4+13}")
    a(f"v_mul_f32 v{vT+5}, {f2u(-1.4426950408889634)}, v{vT+5}")
    a(f"v_exp_f32 v{vT+5}, v{vT+5}"); a("s_nop 0"); a(f"v_add_f32 v{vT+5}, 1.0, v{vT+5}"); a(f"v_rcp_f32 v{vT+5}, v{vT+5}")
    a(f"v_lshlrev_b32 v{vT+3}, 2, v{vN}"); a(f"v_mov_b32 v{vT+4}, {OOB}"); a(f"v_cmp_eq_u32 vcc, 0, v{vHH}"); a("s_nop 1")
    a(f"v_cndmask_b32 v{vT+3}, v{vT+4}, v{vT+3}, vcc")
    a(f"s_lshl_b32 s{sT0}, s{sT4}, 7"); a(f"s_add_u32 s{sT0}, s{sT0}, {GATE}")
    a(f"buffer_store_dword v{vT+5}, v{vT+3}, s[{SWS}:{SWS+3}], s{sT0} offen")
    a(f"{L}_qout:")
    if "st2" not in EXP: st(11)
    a("s_waitcnt lgkmcnt(0)"); a("s_barrier")
    a(f"s_and_b32 s{sT0}, s{sW}, 3"); a(f"s_lshr_b32 s{sT1}, s{sW}, 2")
    a(f"s_mul_i32 s{sT2}, s{sT0}, {32*328}"); a(f"s_mul_i32 s{sT3}, s{sT1}, 144"); a(f"s_add_u32 s{sT2}, s{sT2}, s{sT3}")
    a(f"v_mul_u32_u24 v{vT}, 328, v{vN}"); a(f"v_lshlrev_b32 v{vT+1}, 3, v{vHH}")
    a(f"v_add_u32 v{vT}, v{vT}, v{vT+1}"); a(f"v_add_u32 v{vT}, s{sT2}, v{vT}")
    for h in range(4):
        a(f"ds_read2_b32 v[{8+6*h}:{9+6*h}], v{vT} offset0:{9*h} offset1:{9*h+1}")
        a(f"ds_read2_b32 v[{10+6*h}:{11+6*h}], v{vT} offset0:{9*h+4} offset1:{9*h+5}")
        a(f"ds_read_b32 v{12+6*h}, v{vT} offset:{(9*h+8)*4}")
    a(f"s_and_b32 s{sT2}, s{sCG}, 3"); a(f"s_lshl_b32 s{sT2}, s{sT2}, 3"); a(f"s_lshl_b32 s{sT1}, s{sT1}, 2"); a(f"s_add_u32 s{sT2}, s{sT2}, s{sT1}")
    a(f"s_lshl_b32 s{sT2}, s{sT2}, 6"); a(f"s_lshl_b32 s{sT3}, s{sRB}, 2"); a(f"s_add_u32 s{sT2}, s{sT2}, s{sT3}"); a(f"s_add_u32 s{sT2}, s{sT2}, s{sT0}")
    a(f"s_cmp_ge_u32 s{sCG}, 4")
    a(f"s_cselect_b32 s{sT4}, {QFB0}, {QFA0}"); a(f"s_mov_b32 s{sT5}, {QFA1}"); a(f"s_cmov_b32 s{sT5}, {QFB1}")
    a(f"s_lshl_b32 s{sT0}, s{sT2}, 10"); a(f"s_add_u32 s{sT4}, s{sT4}, s{sT0}")
    a(f"s_lshl_b32 s{sT0}, s{sT2}, 7"); a(f"s_add_u32 s{sT5}, s{sT5}, s{sT0}")
    a(f"v_lshlrev_b32 v{vT+2}, 4, v0")
    a(f"v_lshlrev_b32 v{vT+3}, 2, v{vN}"); a(f"v_mov_b32 v{vT+4}, {OOB}"); a(f"v_cmp_eq_u32 vcc, 0, v{vHH}"); a("s_nop 1")
    a(f"v_cndmask_b32 v{vT+3}, v{vT+4}, v{vT+3}, vcc")
    for h in range(4):
        a(f"s_waitcnt lgkmcnt({3*(3-h)})")
        a(f"buffer_store_dwordx4 v[{8+6*h}:{11+6*h}], v{vT+2}, s[{SWS}:{SWS+3}], s{sT4} offen")
        a(f"buffer_store_dword v{12+6*h}, v{vT+3}, s[{SWS}:{SWS+3}], s{sT5} offen")
        if h < 3:
            a(f"s_add_u32 s{sT4}, s{sT4}, 65536"); a(f"s_add_u32 s{sT5}, s{sT5}, 8192")
    a(f"s_branch {L}_fin")
    a(f"{L}_a_kv:")
    a(f"s_cmp_eq_u32 s{sT5}, 0"); a(f"s_cbranch_scc0 {L}_a_kv1")
    a_main(True, 0); a(f"s_branch {L}_a_kvepi")
    a(f"{L}_a_kv1:"); a_main(True, 1)
    a(f"{L}_a_kvepi:")
    a("s_nop 7"); a("s_nop 7")
    a(f"s_and_b32 s{sT0}, s{sW}, 1"); a(f"s_lshl_b32 s{sT1}, s{sT0}, 1"); a(f"s_add_u32 s{sT3}, s{sT1}, s{sT5}")
    a(f"s_lshl_b32 s{sT4}, s{sRB}, 2"); a(f"s_add_u32 s{sT4}, s{sT4}, s{sT3}")
    a(f"s_and_b32 s{sT0}, s{sCG}, 14"); a(f"s_cmp_eq_u32 s{sT0}, 8"); a(f"s_cbranch_scc0 {L}_noV")
    for i in range(8): a(f"v_cvt_pk_bf16_f32 v{8+i}, v{A4+2*i}, v{A4+2*i+1}")
    a(f"s_and_b32 s{sT1}, s{sCG}, 1"); a(f"s_lshl_b32 s{sT2}, s{sT1}, 4")
    a(f"v_subrev_u32 v{vT+2}, 16, v{vN}"); a(f"v_add_u32 v{vT+3}, s{sT2}, v{vT+2}")
    a(f"s_cmp_eq_u32 s{sT1}, 0"); a(f"s_cselect_b32 s{sT2}, 16, 3")
    a(f"v_cmp_gt_u32 vcc, s{sT2}, v{vT+2}")
    a(f"v_lshlrev_b32 v{vT+3}, 4, v{vT+3}"); a(f"v_mul_u32_u24 v{vT+4}, 304, v{vHH}"); a(f"v_add_u32 v{vT+3}, v{vT+3}, v{vT+4}")
    a(f"v_mov_b32 v{vT+4}, {OOB}"); a(f"v_cndmask_b32 v{vT+3}, v{vT+4}, v{vT+3}, vcc")
    a(f"v_cmp_eq_u32 vcc, 18, v{vN}"); a(f"s_cmp_eq_u32 s{sT1}, 1"); a(f"s_cselect_b64 s[{sT0}:{sT0+1}], -1, 0"); a("s_nop 1")
    a(f"s_and_b64 vcc, vcc, s[{sT0}:{sT0+1}]")
    a(f"v_mov_b32 v{vT+5}, 0x3f803f80")
    for i in range(8): a(f"v_cndmask_b32 v{8+i}, v{8+i}, v{vT+5}, vcc")
    a(f"s_mul_i32 s{sT0}, s{sT4}, {REC}"); a(f"s_add_u32 s{sT0}, s{sT0}, {KIMG+1152}")
    a(f"buffer_store_dwordx4 v[8:11], v{vT+3}, s[{SWS}:{SWS+3}], s{sT0} offen")
    a(f"buffer_store_dwordx4 v[12:15], v{vT+3}, s[{SWS}:{SWS+3}], s{sT0} offen offset:608")
    a(f"{L}_noV:")
    for ia in range(2):
        d = ACC + 16*(2*ia)
        phi(list(range(d, d+16)), 16)
    for r in range(16): a(f"v_mov_b32 v{32+r}, v{A4+r}")
    phi(list(range(32,48)), 16)
    a(f"v_cmp_gt_u32 vcc, 8, v{vN}"); a("s_nop 1")
    for r in range(16): a(f"v_cndmask_b32 v{A4+r}, v{A4+r}, v{32+r}, vcc")
    a(f"s_mul_i32 s{sT1}, s{sT5}, {32*272}"); a(f"s_and_b32 s{sT0}, s{sW}, 1"); a(f"s_lshl_b32 s{sT0}, s{sT0}, 7"); a(f"s_add_u32 s{sT0}, s{sT0}, s{sT1}")
    a(f"v_mul_u32_u24 v{vT}, 272, v{vN}"); a(f"v_lshlrev_b32 v{vT+1}, 3, v{vHH}")
    a(f"v_add_u32 v{vT}, v{vT}, v{vT+1}"); a(f"v_add_u32 v{vT}, s{sT0}, v{vT}")
    for ia in range(2):
        for ib in range(2):
            d = ACC + 16*(2*ia+ib)
            for q in range(4):
                a(f"v_cvt_pk_bf16_f32 v{d+4*q}, v{d+4*q}, v{d+4*q+1}")
                a(f"v_cvt_pk_bf16_f32 v{d+4*q+1}, v{d+4*q+2}, v{d+4*q+3}")
                a(f"ds_write_b64 v{vT}, v[{d+4*q}:{d+4*q+1}] offset:{ib*72*272 + ia*64 + q*16}")
    a(f"v_add_u32 v{vT+2}, 64, v{vN}"); a(f"v_add_u32 v{vT+3}, 128, v{vN}"); a(f"v_cmp_gt_u32 vcc, 8, v{vN}"); a("s_nop 1")
    a(f"v_cndmask_b32 v{vT+2}, v{vT+3}, v{vT+2}, vcc")
    a(f"v_cmp_gt_u32 vcc, 16, v{vN}"); a(f"v_mov_b32 v{vT+3}, 146"); a("s_nop 0"); a(f"v_cndmask_b32 v{vT+2}, v{vT+3}, v{vT+2}, vcc")
    a(f"v_mul_u32_u24 v{vT}, 272, v{vT+2}"); a(f"v_lshlrev_b32 v{vT+1}, 3, v{vHH}"); a(f"v_add_u32 v{vT}, v{vT}, v{vT+1}")
    a(f"s_lshl_b32 s{sT0}, s{sT3}, 6"); a(f"v_add_u32 v{vT}, s{sT0}, v{vT}")
    for q in range(4):
        a(f"v_cvt_pk_bf16_f32 v{A4+4*q}, v{A4+4*q}, v{A4+4*q+1}"); a(f"v_cvt_pk_bf16_f32 v{A4+4*q+1}, v{A4+4*q+2}, v{A4+4*q+3}")
        a(f"ds_write_b64 v{vT}, v[{A4+4*q}:{A4+4*q+1}] offset:{q*16}")
    a(f"{L}_kvout:")
    if "st2" not in EXP: st(11)
    a("s_waitcnt lgkmcnt(0)"); a("s_barrier")
    a(f"s_cmp_ge_u32 s{sW}, 4"); a(f"s_cbranch_scc1 {L}_fin")
    a(f"s_mul_i32 s{sT0}, s{sW}, 18")
    a(f"v_add_u32 v{vT}, s{sT0}, v{vN}"); a(f"v_mul_u32_u24 v{vT}, 272, v{vT}"); a(f"v_lshlrev_b32 v{vT+1}, 4, v{vHH}")
    a(f"v_add_u32 v{vT}, v{vT}, v{vT+1}")
    a(f"s_add_u32 s{sT0}, s{sT0}, 72")
    a(f"v_add_u32 v{vT+2}, s{sT0}, v{vN}"); a(f"v_mov_b32 v{vT+3}, 144"); a(f"v_cmp_gt_u32 vcc, 18, v{vN}"); a("s_nop 1")
    a(f"v_cndmask_b32 v{vT+2}, v{vT+3}, v{vT+2}, vcc"); a(f"v_mul_u32_u24 v{vT+2}, 272, v{vT+2}"); a(f"v_add_u32 v{vT+2}, v{vT+2}, v{vT+1}")
    for ks in range(8):
        a(f"ds_read_b128 v[{8+8*ks}:{11+8*ks}], v{vT} offset:{32*ks}")
        a(f"ds_read_b128 v[{12+8*ks}:{15+8*ks}], v{vT+2} offset:{32*ks}")
    D = 80
    for ks in range(8):
        a(f"s_waitcnt lgkmcnt({min(15,2*(7-ks))})")
        c = "0" if ks == 0 else f"v[{D}:{D+15}]"
        a(f"v_mfma_f32_32x32x16_bf16 v[{D}:{D+15}], v[{8+8*ks}:{11+8*ks}], v[{12+8*ks}:{15+8*ks}], {c}")
    a(f"s_sub_u32 s{sT0}, s{sCG}, 8"); a(f"s_lshl_b32 s{sT0}, s{sT0}, 2"); a(f"s_add_u32 s{sT0}, s{sT0}, s{sW}")
    a(f"s_lshl_b32 s{sT0}, s{sT0}, 4"); a(f"s_add_u32 s{sT0}, s{sT0}, s{sRB}"); a(f"s_mul_i32 s{sT0}, s{sT0}, 1408"); a(f"s_add_u32 s{sT0}, s{sT0}, {KVP}")
    a(f"v_mul_u32_u24 v{vT+4}, 19, v{vHH}"); a(f"v_add_u32 v{vT+4}, v{vT+4}, v{vN}"); a(f"v_lshlrev_b32 v{vT+4}, 4, v{vT+4}")
    a(f"v_mov_b32 v{vT+5}, {OOB}"); a(f"v_cmp_gt_u32 vcc, 19, v{vN}"); a("s_nop 1"); a(f"v_cndmask_b32 v{vT+4}, v{vT+5}, v{vT+4}, vcc")
    a(f"v_lshlrev_b32 v{vT+6}, 3, v{vN}"); a(f"v_cmp_gt_u32 vcc, 19, v0"); a("s_nop 1"); a(f"v_cndmask_b32 v{vT+6}, v{vT+5}, v{vT+6}, vcc")
    a("s_nop 7"); a("s_nop 3")
    a(f"buffer_store_dwordx4 v[{D}:{D+3}], v{vT+4}, s[{SWS}:{SWS+3}], s{sT0} offen")
    a(f"buffer_store_dwordx4 v[{D+4}:{D+7}], v{vT+4}, s[{SWS}:{SWS+3}], s{sT0} offen offset:608")
    a(f"buffer_store_dwordx2 v[{D+8}:{D+9}], v{vT+6}, s[{SWS}:{SWS+3}], s{sT0} offen offset:1216")
    a(f"s_branch {L}_fin")
    a(f"{L}_bsetup:")
    srd(SWS, 56, 57, WS_USED)
    a(f"s_cmp_lt_u32 s{sCG}, 4")
    a(f"s_cselect_b32 s{sT0}, s6, s52"); a(f"s_cselect_b32 s{sT1}, s7, s53")
    a(f"s_mov_b32 s{sRS}, 3456"); a(f"s_cmov_b32 s{sRS}, 1152")
    a(f"s_mov_b32 s{sT2}, {576*3456}"); a(f"s_cmov_b32 s{sT2}, {576*1152}")
    a(f"s_mov_b32 s{SWm}, s{sT0}"); a(f"s_and_b32 s{SWm+1}, s{sT1}, 0xffff"); a(f"s_mov_b32 s{SWm+2}, s{sT2}"); a(f"s_mov_b32 s{SWm+3}, 0x20000")
    a(f"s_and_b32 s{sT0}, s{sCG}, 3"); a(f"s_mul_i32 s{sT0}, s{sT0}, 288")
    a(f"s_sub_u32 s{sT1}, s{sCG}, 8"); a(f"s_mul_i32 s{sT1}, s{sT1}, 144"); a(f"s_add_u32 s{sT1}, s{sT1}, 1152")
    a(f"s_cmp_eq_u32 s{sKV}, 0"); a(f"s_cselect_b32 s{sColA}, s{sT0}, s{sT1}")
    a(f"s_lshl_b32 s{sWstr}, s{sRS}, 6")
    def w_off(dst, i_s):
        a(f"s_lshl_b32 s{sT2}, s{i_s}, 6")
        a(f"v_add_u32 v{vT+7}, s{sT2}, v0")
        a(f"v_mul_u32_u24 v{vT+8}, 3641, v{vT+7}"); a(f"v_lshrrev_b32 v{vT+8}, 16, v{vT+8}")
        a(f"v_mul_u32_u24 v{vT+9}, 18, v{vT+8}"); a(f"v_sub_u32 v{vT+9}, v{vT+7}, v{vT+9}")
        a(f"v_lshlrev_b32 v{vT+10}, 1, v{vT+8}"); a(f"v_sub_u32 v{vT+10}, v{vT+9}, v{vT+10}"); a(f"v_and_b32 v{vT+10}, 15, v{vT+10}")
        a(f"v_cmp_gt_u32 vcc, 16, v{vT+9}"); a("s_nop 1")
        a(f"v_cndmask_b32 v{vT+9}, v{vT+9}, v{vT+10}, vcc")
        a(f"s_cmp_eq_u32 s{sKV}, 0"); a(f"s_cbranch_scc1 {L}_wq{dst}")
        a(f"v_lshrrev_b32 v{vT+10}, 3, v{vT+9}"); a(f"v_lshlrev_b32 v{vT+10}, 2, v{vT+10}")
        a(f"v_and_b32 v{vT+11}, 3, v{vT+9}"); a(f"v_add_u32 v{vT+10}, v{vT+10}, v{vT+11}")
        a(f"v_lshrrev_b32 v{vT+11}, 2, v{vT+9}"); a(f"v_and_b32 v{vT+11}, 1, v{vT+11}")
        a(f"v_cmp_eq_u32 vcc, 17, v{vT+9}"); a(f"v_mov_b32 v{vT+12}, 8"); a(f"v_mov_b32 v{vT+13}, 1")
        a(f"v_cndmask_b32 v{vT+10}, v{vT+10}, v{vT+12}, vcc"); a(f"v_cndmask_b32 v{vT+11}, v{vT+11}, v{vT+13}, vcc")
        a(f"v_mul_u32_u24 v{vT+11}, 72, v{vT+11}"); a(f"v_add_u32 v{vT+9}, v{vT+10}, v{vT+11}")
        a(f"{L}_wq{dst}:")
        a(f"v_lshlrev_b32 v{vT+9}, 4, v{vT+9}")
        a(f"v_mul_lo_u32 v{vT+8}, v{vT+8}, s{sRS}")
        a(f"v_add_u32 v{vT+9}, v{vT+9}, v{vT+8}")
        a(f"v_add_u32 v{dst}, s{sColA}, v{vT+9}")
    def dma_w(c, ms):
        s = c % 4
        for m in ms:
            if m < 4:
                a(f"s_add_u32 m0, s{sB1024}, {WB + s*WS_ + 4096*m}"); a("s_nop 0")
                a(f"buffer_load_dwordx4 v{vWo+m}, s[{SWm}:{SWm+3}], s{sWo} offen lds")
            else:
                a(f"s_add_u32 m0, s{sB1024}, {WB + s*WS_ + 16384}"); a("s_nop 0")
                a(f"buffer_load_dwordx4 v{vW9}, s[{S9}:{S9+3}], s{s9o} offen lds")
    def w_soff():
        a(f"s_mul_i32 s{sWo}, s{sCA}, s{sWstr}"); a(f"s_mul_i32 s{s9o}, s{sCA}, s{s9str}")
    for m in range(4):
        a(f"s_add_u32 s{sT3}, s{sB}, {4*m}")
        w_off(vWo+m, sT3)
    a(f"s_add_u32 s{sT3}, s{sB}, 16")
    w_off(vW9, sT3)
    a(f"s_mov_b32 s{S9}, s{SWm}"); a(f"s_mov_b32 s{S9+1}, s{SWm+1}"); a(f"s_mov_b32 s{S9+2}, s{SWm+2}"); a(f"s_mov_b32 s{S9+3}, 0x20000")
    a(f"s_mov_b32 s{s9str}, s{sWstr}")
    a(f"s_cmp_lt_u32 s{sB}, 2"); a(f"s_cbranch_scc1 {L}_b9done")
    a(f"s_sub_u32 s{sT0}, s{sB}, 2"); a(f"s_lshl_b32 s{sT0}, s{sT0}, 5")
    a(f"v_lshrrev_b32 v{vT+7}, 1, v0"); a(f"v_add_u32 v{vT+7}, s{sT0}, v{vT+7}")
    a(f"v_and_b32 v{vT+8}, 1, v0")
    a(f"s_cmp_eq_u32 s{sCG}, 2"); a(f"s_cbranch_scc1 {L}_bgate")
    a(f"s_cmp_ge_u32 s{sCG}, 8")
    a(f"s_cselect_b32 s{S9}, s10, s8"); a(f"s_cselect_b32 s{sT0}, s11, s9"); a(f"s_and_b32 s{S9+1}, s{sT0}, 0xffff")
    a(f"s_and_b32 s{sT0}, s{sCG}, 6"); a(f"s_cmp_eq_u32 s{sT0}, 0"); a(f"s_cselect_b32 s{S9+2}, {576*36}, 0")
    a(f"s_movk_i32 s{s9str}, 2304")
    a(f"v_mul_u32_u24 v{vT+7}, 36, v{vT+7}"); a(f"v_lshlrev_b32 v{vT+8}, 4, v{vT+8}"); a(f"v_add_u32 v{vT+7}, v{vT+7}, v{vT+8}")
    a(f"s_and_b32 s{sT0}, s{sCG}, 1"); a(f"s_lshl_b32 s{sT0}, s{sT0}, 5")
    a(f"v_add_u32 v{vW9}, s{sT0}, v{vT+7}")
    a(f"s_branch {L}_b9done")
    a(f"{L}_bgate:")
    a(f"s_mov_b32 s{S9}, s54"); a(f"s_and_b32 s{S9+1}, s55, 0xffff"); a(f"s_movk_i32 s{S9+2}, 1152"); a(f"s_movk_i32 s{s9str}, 128")
    a(f"v_and_b32 v{vT+9}, 1, v{vT+7}"); a(f"v_cmp_eq_u32 vcc, v{vT+9}, v{vT+8}")
    a(f"v_and_b32 v{vT+7}, 0xfffffffe, v{vT+7}"); a(f"v_lshlrev_b32 v{vT+7}, 1, v{vT+7}"); a(f"v_mov_b32 v{vT+8}, {OOB}")
    a(f"v_cndmask_b32 v{vW9}, v{vT+8}, v{vT+7}, vcc")
    a(f"{L}_b9done:")
    a(f"s_mov_b32 s{sCA}, s{sC0}")
    if "st2" in EXP: st(11)
    for c in range(2):
        if c > 0: dma_x(c)
        w_soff(); dma_w(c, range(5)); next_ca()
    a("s_waitcnt vmcnt(9)")
    if "st2" in EXP: st(12)
    a("s_barrier"); st(1)
    for c in range(2,4):
        dma_x(c); w_soff(); dma_w(c, range(5)); next_ca()
    waits = {0:18, 1:18, 2:18, 3:18, 4:18, 5:18, 6:9, 7:0}
    for c in range(9):
        if c < 8: a(f"s_waitcnt vmcnt({waits[c]})")
        a("s_barrier"); st(2+c)
        if c+4 <= 8:
            dma_x(c+4); w_soff(); dma_w(c+4, range(5)); next_ca()
    a(f"s_cmp_eq_u32 s{sKV}, 0"); a(f"s_cbranch_scc1 {L}_qout")
    a(f"v_mov_b32 v8, 0x3f803f80"); a("v_mov_b32 v9, v8"); a("v_mov_b32 v10, v8"); a("v_mov_b32 v11, v8")
    a(f"v_lshlrev_b32 v{vT+2}, 4, v0"); a(f"v_and_b32 v{vT+2}, 255, v{vT+2}"); a(f"v_add_u32 v{vT+2}, {144*272}, v{vT+2}")
    a(f"ds_write_b128 v{vT+2}, v[8:11]")
    a(f"s_branch {L}_kvout")
    a(f"{L}_fin:")
    if stamp:
        if "st2" not in EXP: st(12)
        a("s_memrealtime s[94:95]"); a("s_mov_b64 exec, -1"); a("s_waitcnt lgkmcnt(0)")
        a(f"s_lshl_b32 s{sT2}, s2, 3"); a(f"s_add_u32 s{sT2}, s{sT2}, s{sW}"); a(f"s_lshl_b32 s{sT2}, s{sT2}, 6"); a(f"s_add_u32 s{sT2}, s{sT2}, 0xF40000")
        a(f"v_mov_b32 v1, 0")
        for i in range(nst[0]):
            a(f"s_sub_u32 s{sT3}, s{64+2*i}, s64"); a(f"v_mov_b32 v2, s{sT3}")
            a(f"buffer_store_dword v2, v1, s[{SWS}:{SWS+3}], s{sT2} offen offset:{4*i}")
        a(f"s_sub_u32 s{sT3}, s94, s92"); a(f"v_mov_b32 v2, s{sT3}")
        a(f"buffer_store_dword v2, v1, s[{SWS}:{SWS+3}], s{sT2} offen offset:60")
        a(f"v_mov_b32 v2, s92")
        a(f"buffer_store_dword v2, v1, s[{SWS}:{SWS+3}], s{sT2} offen offset:56")
    a(f"{L}_end:")
    return kernel_header(name) + a.text() + kernel_footer(name, NV)
if __name__ == "__main__":
    print(gen_k1())
```

```python
from asmlib import *
import os
EXP = os.environ.get("K2EXP","")
OOB = 0x7ff00000
QB4 = 16*REC
STB = KIMG_BYTES
LDS = STB + 12288
N1 = int(os.environ.get("K2N1","12"))
BA1 = int(os.environ.get("K2BA1","6"))

def gen_k2(name="attn_kernel", stamp=False):
    a = Asm(); L = name
    vLane16 = 4
    vN, vHH, vX8 = 2, 1, 5
    QA = [8, 14]
    O  = [20, 36]
    S  = [52, 68, 84, 100]
    KV = [116, 130]
    vAK, vAK1, vAV, vIdx = 144, 145, 146, 147
    vMM = [148, 149]
    QB = 150; vG = 155
    KP = 156
    T = 176
    NV = 256
    sJ, sR, sW, sHL, sKH, sA = 12, 13, 14, 15, 16, 17
    SRD, SRDK, SDBG = 8, 20, 32
    sFlag, sCnt, sSeg = 24, 25, 18
    sT0, sT1, sT2, sT3 = 26, 27, 28, 29
    sN2, sN3, sRot, sHead = 30, 31, 19, 36
    SWO = 40
    nst = [0]
    def st(i):
        if stamp:
            nst[0] = max(nst[0], i+1)
            a(f"s_memtime s[{64+2*i}:{65+2*i}]")
    K = lambda p: KV[p]; K1 = lambda p: KV[p]+4; V0 = lambda p: KV[p]+6; V1 = lambda p: KV[p]+10
    a(f"s_cmp_ge_u32 s2, 256"); a(f"s_cbranch_scc1 {L}_end")
    a("s_load_dwordx2 s[4:5], s[0:1], 88")
    a("s_load_dwordx2 s[6:7], s[0:1], 80")
    a("s_load_dwordx2 s[44:45], s[0:1], 32")
    a("s_load_dwordx2 s[46:47], s[0:1], 56")
    st(0)
    if stamp: a("s_memrealtime s[92:93]")
    a(f"s_and_b32 s{sT0}, s2, 7"); a(f"s_lshr_b32 s{sT1}, s2, 3"); a(f"s_and_b32 s{sRot}, s{sT1}, 3"); a(f"s_lshl_b32 s{sT2}, s{sRot}, 3")
    a(f"s_add_u32 s{sR}, s{sT0}, s{sT2}"); a(f"s_lshr_b32 s{sJ}, s2, 5")
    a(f"s_add_u32 s{sRot}, s{sRot}, s{sJ}"); a(f"s_and_b32 s{sRot}, s{sRot}, 3")
    a(f"v_lshrrev_b32 v{T}, 6, v0"); a(f"v_and_b32 v0, 63, v0")
    a(f"v_readfirstlane_b32 s{sW}, v{T}")
    a(f"v_lshlrev_b32 v{vLane16}, 4, v0"); a(f"v_lshrrev_b32 v{vHH}, 5, v0"); a(f"v_and_b32 v{vN}, 31, v0")
    a("s_nop 0")
    a(f"s_and_b32 s{sHL}, s{sW}, 3"); a(f"s_lshr_b32 s{sKH}, s{sW}, 2"); a(f"s_xor_b32 s{sKH}, s{sKH}, 1"); a(f"s_lshl_b32 s{sA}, s{sW}, 10")
    if "noprio" not in EXP: a("s_setprio 1")
    a(f"s_lshl_b32 s{sHead}, s{sJ}, 2"); a(f"s_add_u32 s{sHead}, s{sHead}, s{sHL}")
    a(f"s_lshl_b32 s{sT1}, s{sHead}, 6"); a(f"s_lshl_b32 s{sT2}, s{sR}, 1"); a(f"s_add_u32 s{sT1}, s{sT1}, s{sT2}")
    a(f"v_lshlrev_b32 v{vX8}, 2, v{vN}"); a(f"v_cmp_eq_u32 vcc, 0, v{vHH}"); a(f"v_mov_b32 v{T}, {OOB}")
    a(f"s_lshl_b32 s{sT2}, s{sT1}, 10"); a(f"s_lshl_b32 s{sT3}, s{sT1}, 7"); a(f"s_add_u32 s{sT3}, s{sT3}, {QFA1}")
    a(f"v_cndmask_b32 v{vX8}, v{T}, v{vX8}, vcc")
    a(f"v_lshlrev_b32 v{T+1}, 2, v0"); a(f"v_mov_b32 v{T+15}, {OOB}")
    a("s_waitcnt lgkmcnt(0)")
    a(f"s_mov_b32 s{SRD}, s4"); a(f"s_and_b32 s{SRD+1}, s5, 0xffff"); a(f"s_mov_b32 s{SRD+2}, {WS_USED}"); a(f"s_mov_b32 s{SRD+3}, 0x20000")
    a(f"buffer_load_dwordx4 v[{QA[0]}:{QA[0]+3}], v{vLane16}, s[{SRD}:{SRD+3}], s{sT2} offen")
    a(f"buffer_load_dwordx4 v[{QA[1]}:{QA[1]+3}], v{vLane16}, s[{SRD}:{SRD+3}], s{sT2} offen offset:1024")
    a(f"buffer_load_dword v{QA[0]+4}, v{vX8}, s[{SRD}:{SRD+3}], s{sT3} offen")
    a(f"buffer_load_dword v{QA[1]+4}, v{vX8}, s[{SRD}:{SRD+3}], s{sT3} offen offset:128")
    a(f"s_mov_b32 s{sCnt}, {KMAX}")
    a(f"buffer_load_dword v{T+2}, v{T+1}, s[{SRD}:{SRD+3}], s{sCnt} offen")
    a(f"buffer_load_dword v{T+3}, v{T+1}, s[{SRD}:{SRD+3}], s{sCnt} offen offset:256")
    a(f"s_add_u32 s{SRDK}, s4, {KIMG}"); a(f"s_addc_u32 s{SRDK+1}, s5, 0"); a(f"s_and_b32 s{SRDK+1}, s{SRDK+1}, 0xffff")
    a(f"s_mov_b32 s{SRDK+2}, {KIMG_BYTES}"); a(f"s_mov_b32 s{SRDK+3}, 0x20000")
    sGQ = [48, 49, 50, 51]
    for q in range(4):
        a(f"s_add_u32 s{sT0}, s{sRot}, {q}"); a(f"s_and_b32 s{sT0}, s{sT0}, 3"); a(f"s_mul_i32 s{sT0}, s{sT0}, {QB4}")
        a(f"s_sub_u32 s{sGQ[q]}, s{sT0}, {q*QB4}")
    def dma(lds_s, lds_imm, q):
        a(f"s_add_u32 m0, s{lds_s}, {lds_imm}"); a(f"s_add_u32 s{sT0}, m0, s{sGQ[q]}")
        a(f"buffer_load_dwordx4 v{vLane16}, s[{SRDK}:{SRDK+3}], s{sT0} offen lds")
    a(f"s_lshl_b32 s{sT1}, s{sHead}, 6"); a(f"s_lshl_b32 s{sT2}, s{sR}, 1"); a(f"s_add_u32 s{sT2}, s{sT2}, s{sKH}"); a(f"s_add_u32 s{sT1}, s{sT1}, s{sT2}")
    a(f"s_lshl_b32 s{sT3}, s{sT1}, 10"); a(f"s_add_u32 s{sT3}, s{sT3}, {QFB0}")
    a(f"buffer_load_dwordx4 v[{QB}:{QB+3}], v{vLane16}, s[{SRD}:{SRD+3}], s{sT3} offen")
    a(f"s_lshl_b32 s{sT3}, s{sT1}, 7"); a(f"s_add_u32 s{sT3}, s{sT3}, {QFB1}")
    a(f"buffer_load_dword v{QB+4}, v{vX8}, s[{SRD}:{SRD+3}], s{sT3} offen")
    a(f"s_lshl_b32 s{sT2}, s{sT2}, 7"); a(f"s_add_u32 s{sT2}, s{sT2}, {GATE}"); a(f"v_lshlrev_b32 v{T+4}, 2, v{vN}")
    a(f"buffer_load_dword v{vG}, v{T+4}, s[{SRD}:{SRD+3}], s{sT2} offen")
    a(f"s_cmp_eq_u32 s{sKH}, 0"); a(f"s_cbranch_scc1 {L}_adma")
    a(f"s_mov_b32 s{sA}, {2*QB4}")
    for n in range(12): dma(sA, 1024*n, 2)
    a(f"s_branch {L}_dmadone")
    a(f"{L}_adma:")
    a(f"s_lshl_b32 s{sT1}, s{sHL}, 10")
    for n in range(7):
        if n < 6: dma(sT1, 2*QB4 + 9472 + 4096*n, 2)
        else:
            a(f"s_add_u32 s{sT2}, s{sT1}, {9472 + 4096*6}"); a(f"s_min_u32 s{sT2}, s{sT2}, 36864")
            dma(sT2, 2*QB4, 2)
    a(f"{L}_dmadone:")
    st(1)
    a(f"s_mul_i32 s{sT2}, s{sKH}, {32*REC}")
    a(f"v_add_u32 v{vAK}, s{sT2}, v{vLane16}")
    a(f"v_lshlrev_b32 v{vAK1}, 2, v{vN}"); a(f"v_add_u32 v{vAK1}, s{sT2}, v{vAK1}"); a(f"v_add_u32 v{vAK1}, 1024, v{vAK1}")
    a(f"v_mov_b32 v{T+4}, 4"); a(f"v_cmp_gt_u32 vcc, 19, v{vN}"); a(f"v_subrev_u32 v{T+5}, 20, v{vN}"); a("s_nop 0")
    a(f"v_cndmask_b32 v{T+4}, v{T+4}, v{vN}, vcc")
    a(f"v_cmp_gt_u32 vcc, 8, v{T+5}"); a(f"v_mov_b32 v{T+5}, 0"); a("s_nop 0")
    a(f"v_cndmask_b32 v{T+4}, v{T+4}, v{T+5}, vcc")
    a(f"v_lshlrev_b32 v{T+4}, 4, v{T+4}"); a(f"v_mul_u32_u24 v{T+5}, 304, v{vHH}"); a(f"v_add_u32 v{T+4}, v{T+4}, v{T+5}")
    a(f"v_add_u32 v{T+4}, s{sT2}, v{T+4}"); a(f"v_add_u32 v{vAV}, 1152, v{T+4}")
    if "nozpad" not in EXP:
        a(f"v_cmp_gt_u32 vcc, 19, v{vN}"); a(f"v_mov_b32 v{T+5}, 0x80000"); a("s_nop 0"); a(f"v_cndmask_b32 v{vAV}, v{T+5}, v{vAV}, vcc")
    a(f"v_mov_b32 v{vIdx}, 0xdddddddd")
    for p in range(2): a(f"v_mov_b32 v{K1(p)+1}, 0x3f80")
    for r in range(4): a(f"v_mov_b32 v{V1(1)+r}, 0")
    for r in range(8,16): a(f"v_mov_b32 v{S[3]+r}, 0")
    for t in range(2):
        for r in range(16): a(f"v_mov_b32 v{O[t]+r}, 0")
    a(f"s_cmp_eq_u32 s{sKH}, 0"); a(f"s_cbranch_scc1 {L}_w39")
    a(f"s_waitcnt vmcnt(15)"); a(f"s_branch {L}_w13")
    a(f"{L}_w39:"); a(f"s_waitcnt vmcnt(10)")
    a(f"{L}_w13:")
    st(2)
    for d in ("row_shr:1","row_shr:2","row_shr:4","row_shr:8"):
        a(f"v_max_f32_dpp v{T+2}, v{T+2}, v{T+2} {d} row_mask:0xf bank_mask:0xf bound_ctrl:0")
        a(f"v_max_f32_dpp v{T+3}, v{T+3}, v{T+3} {d} row_mask:0xf bank_mask:0xf bound_ctrl:0")
        a("s_nop 0")
    a(f"v_max_f32_dpp v{T+2}, v{T+2}, v{T+2} row_bcast:15 row_mask:0xa bank_mask:0xf")
    a(f"v_max_f32_dpp v{T+3}, v{T+3}, v{T+3} row_bcast:15 row_mask:0xa bank_mask:0xf")
    a("s_nop 0")
    a(f"v_max_f32_dpp v{T+2}, v{T+2}, v{T+2} row_bcast:31 row_mask:0xc bank_mask:0xf")
    a(f"v_max_f32_dpp v{T+3}, v{T+3}, v{T+3} row_bcast:31 row_mask:0xc bank_mask:0xf")
    a("s_nop 0")
    a(f"v_readlane_b32 s{sT2}, v{T+2}, 63"); a(f"v_readlane_b32 s{sT3}, v{T+3}, 63")
    a(f"v_mov_b32 v{T+4}, 0"); a(f"v_mov_b32 v{T+5}, 0")
    a(f"v_mov_b32 v{T+2}, s{sT2}")
    for r in range(5):
        a(f"v_dot2_f32_bf16 v{T+4}, v{QA[0]+r}, v{QA[0]+r}, v{T+4}")
        a(f"v_dot2_f32_bf16 v{T+5}, v{QA[1]+r}, v{QA[1]+r}, v{T+5}")
    a(f"v_add_f32 v{T+2}, s{sT3}, v{T+2}")
    a(f"v_mov_b32 v{T+8}, 0x3f820000"); a(f"v_mov_b32 v{T+9}, 0x42200000")
    a(f"v_mov_b32 v{T+6}, v{T+4}"); a(f"v_mov_b32 v{T+7}, v{T+5}")
    a("s_nop 1")
    a(f"v_permlane32_swap_b32 v{T+4}, v{T+6}"); a(f"v_permlane32_swap_b32 v{T+5}, v{T+7}")
    a(f"v_cmp_eq_u32 vcc, 0, v{vHH}")
    a(f"v_add_f32 v{T+4}, v{T+4}, v{T+6}"); a(f"v_add_f32 v{T+5}, v{T+5}, v{T+7}")
    a(f"v_mul_f32 v{T+4}, v{T+4}, v{T+2}"); a(f"v_mul_f32 v{T+5}, v{T+5}, v{T+2}")
    a(f"v_sqrt_f32 v{T+4}, v{T+4}"); a(f"v_sqrt_f32 v{T+5}, v{T+5}")
    a("s_nop 0")
    for t in range(2):
        a(f"v_fma_f32 v{T+4+t}, -v{T+4+t}, v{T+8}, v{T+9}")
    for t in range(2):
        a(f"v_cvt_pk_bf16_f32 v{T+6+t}, v{T+4+t}, 0")
    for t in range(2):
        a(f"v_lshlrev_b32 v{vMM[t]}, 16, v{T+6+t}")
        a(f"v_cndmask_b32 v{QA[t]+5}, 0, v{T+6+t}, vcc")
    vOA = T+24; sOB = 37
    a(f"v_cmp_eq_u32 vcc, 0, v{vHH}")
    a(f"v_lshlrev_b32 v{T+9}, 4, v{vN}")
    a(f"s_lshl_b32 s{sT2}, s{sJ}, 3"); a(f"s_lshl_b32 s{sT3}, s{sHL}, 1"); a(f"s_add_u32 s{sT2}, s{sT2}, s{sT3}"); a(f"s_lshl_b32 s{sT2}, s{sT2}, 9")
    a(f"v_lshlrev_b32 v{T+10}, 9, v{vHH}"); a(f"v_add_u32 v{T+10}, v{T+10}, v{T+9}"); a(f"v_add_u32 v{vOA}, s{sT2}, v{T+10}")
    a(f"s_add_u32 s{sT2}, s{sJ}, 64"); a(f"s_lshl_b32 s{sT2}, s{sT2}, 9"); a(f"s_lshl_b32 s{sT3}, s{sHL}, 2"); a(f"s_add_u32 s{sT2}, s{sT2}, s{sT3}")
    a(f"v_add_u32 v{T+9}, s{sT2}, v{T+9}"); a(f"v_mov_b32 v{T+10}, {OOB}"); a(f"v_cndmask_b32 v{vOA+1}, v{T+10}, v{T+9}, vcc")
    a(f"s_lshl_b32 s{sT3}, s{sR}, 1"); a(f"s_add_u32 s{sT3}, s{sT3}, s{sKH}"); a(f"s_mul_i32 s{sT3}, s{sT3}, 72")
    a(f"s_lshl_b32 s{sT3}, s{sT3}, 9"); a(f"s_add_u32 s{sOB}, s{sT3}, {OF}")
    st(3)
    a(f"s_cmp_eq_u32 s{sKH}, 0"); a(f"s_cbranch_scc0 {L}_bstart")
    a(f"s_lshl_b32 s{sT1}, s{sHL}, 10")
    for n in range(9): dma(sT1, 4096*n, 0)
    a(f"s_mov_b32 s{sT2}, 0"); dma(sT2, 36*1024, 0)
    a(f"s_lshl_b32 s{sT1}, s{sHL}, 10")
    for n in range(19):
        if n <= 8: dma(sT1, QB4 + 4096*n, 1)
        elif n == 9:
            a(f"s_cmp_eq_u32 s{sHL}, 0")
            a(f"s_cselect_b32 s{sT2}, {QB4 + 36*1024}, 0"); a(f"s_cselect_b32 s{sT3}, s{sGQ[1]}, s{sGQ[3]}")
            a(f"s_add_u32 s{sCnt}, s{sT1}, {3*QB4 - 1024}"); a(f"s_cmp_eq_u32 s{sHL}, 0"); a(f"s_cselect_b32 m0, s{sT2}, s{sCnt}")
            a(f"s_add_u32 s{sT0}, m0, s{sT3}")
            a(f"buffer_load_dwordx4 v{vLane16}, s[{SRDK}:{SRDK+3}], s{sT0} offen lds")
        elif n <= 17: dma(sT1, 3*QB4 + (4*n-37)*1024, 3)
        else:
            a(f"s_min_u32 s{sT2}, s{sHL}, 1"); a(f"s_lshl_b32 s{sT2}, s{sT2}, 10")
            dma(sT2, 3*QB4 + (72-37)*1024, 3)
    a(f"s_waitcnt vmcnt(19)")
    a("s_barrier")
    st(4)
    a(f"s_cmp_eq_u32 s{sHL}, 3"); a(f"s_cbranch_scc0 {L}_noslice")
    a(f"s_mul_i32 s{sT2}, s{sR}, 43"); a(f"v_add_u32 v{T+12}, s{sT2}, v0")
    a(f"v_mul_u32_u24 v{T+13}, 12265, v{T+12}"); a(f"v_lshrrev_b32 v{T+13}, 22, v{T+13}")
    a(f"v_mul_u32_u24 v{T+14}, 342, v{T+13}"); a(f"v_sub_u32 v{T+14}, v{T+12}, v{T+14}"); a(f"v_lshlrev_b32 v{T+14}, 2, v{T+14}")
    a(f"s_lshl_b32 s{sT2}, s{sJ}, 2"); a(f"v_add_u32 v{T+13}, s{sT2}, v{T+13}")
    a(f"v_mul_u32_u24 v{T+15}, 1408, v{T+13}"); a(f"v_add_u32 v{T+15}, v{T+15}, v{T+14}")
    a(f"v_mul_u32_u24 v{T+13}, {16*1408}, v{T+13}"); a(f"v_add_u32 v{T+13}, v{T+13}, v{T+14}")
    a(f"s_movk_i32 s{sT0}, 1368"); a(f"v_cmp_gt_u32 s[{sT2}:{sT2+1}], s{sT0}, v{T+12}"); a(f"v_cmp_gt_u32 vcc, 43, v0"); a("s_nop 1")
    a(f"s_and_b64 vcc, vcc, s[{sT2}:{sT2+1}]"); a(f"v_mov_b32 v{T+14}, {OOB}")
    a(f"v_cndmask_b32 v{T+13}, v{T+14}, v{T+13}, vcc"); a(f"v_cndmask_b32 v{T+15}, v{T+14}, v{T+15}, vcc")
    a(f"s_mov_b32 s{sT2}, {KVP}")
    for p in range(16):
        a(f"buffer_load_dword v{KP+p}, v{T+13}, s[{SRD}:{SRD+3}], s{sT2} offen")
        if p < 15: a(f"s_add_u32 s{sT2}, s{sT2}, 1408")
    a(f"{L}_noslice:")
    a(f"s_mov_b32 s{sCnt}, 1"); a(f"s_mov_b32 s{sN2}, 7"); a(f"s_mov_b32 s{sN3}, 8"); a(f"s_mov_b32 s{sSeg}, 1")
    a(f"s_branch {L}_pass")
    a(f"{L}_bstart:")
    a("s_waitcnt vmcnt(0)")
    st(4)
    a(f"s_mov_b32 s{sCnt}, 2"); a(f"s_mov_b32 s{sN2}, {N1-BA1}"); a(f"s_mov_b32 s{sN3}, {16-N1}"); a(f"s_mov_b32 s{sSeg}, 0")
    a(f"{L}_pass:")
    st(5)
    a(f"ds_read_b128 v[{K(0)}:{K(0)+3}], v{vAK}"); a(f"ds_read_b32 v{K1(0)}, v{vAK1}")
    a(f"ds_read_b128 v[{V0(0)}:{V0(0)+3}], v{vAV}"); a(f"ds_read_b128 v[{V1(0)}:{V1(0)+3}], v{vAV} offset:608")
    a("s_waitcnt lgkmcnt(0)")
    a(f"v_mfma_f32_32x32x16_bf16 v[{S[0]}:{S[0]+15}], v[{K(0)}:{K(0)+3}], v[{QA[0]}:{QA[0]+3}], 0")
    a(f"v_mfma_f32_32x32x8bf16_1k v[{S[0]}:{S[0]+15}], v[{K1(0)}:{K1(0)+1}], v[{QA[0]+4}:{QA[0]+5}], v[{S[0]}:{S[0]+15}]")
    a("s_nop 7"); a("s_nop 3")
    def tile(u):
        p = u//2; q = u%2
        Sc, Sn, Sp = S[u], S[(u+1)%4], S[(u-1)%4]
        pn = ((u+1)%4)//2; qn = (u+1)%2
        pp = ((u-1)%4)//2; qp = (u-1)%2
        ex = lambda r: a(f"v_exp_f32 v{Sc+r}, v{Sc+r}")
        off = (p+1)*REC; x = 1-p
        if q == 1: a("s_waitcnt lgkmcnt(1)")
        a(f"v_mfma_f32_32x32x16_bf16 v[{Sn}:{Sn+15}], v[{K(pn)}:{K(pn)+3}], v[{QA[qn]}:{QA[qn]+3}], 0")
        ex(0)
        if q == 0: a(f"ds_read_b128 v[{K(x)}:{K(x)+3}], v{vAK} offset:{off}")
        ex(1)
        if q == 0: a(f"ds_read_b32 v{K1(x)}, v{vAK1} offset:{off}")
        ex(2)
        if q == 0: a(f"ds_read_b128 v[{V0(x)}:{V0(x)+3}], v{vAV} offset:{off}")
        ex(3)
        a(f"v_mfma_f32_32x32x8bf16_1k v[{Sn}:{Sn+15}], v[{K1(pn)}:{K1(pn)+1}], v[{QA[qn]+4}:{QA[qn]+5}], v[{Sn}:{Sn+15}]")
        for r in range(4,8): ex(r)
        a(f"v_smfmac_f32_32x32x32_bf16 v[{O[qp]}:{O[qp]+15}], v[{V1(pp)}:{V1(pp)+3}], v[{Sp+8}:{Sp+15}], v{vIdx}")
        ex(8)
        if q == 0: a(f"ds_read_b128 v[{V1(x)}:{V1(x)+3}], v{vAV} offset:{off+608}")
        for r in range(9,12): ex(r)
        a(f"v_smfmac_f32_32x32x32_bf16 v[{O[q]}:{O[q]+15}], v[{V0(p)}:{V0(p)+3}], v[{Sc}:{Sc+7}], v{vIdx}")
        for r in range(12,16): ex(r)
    a(".p2align 6")
    a(f"{L}_loop:")
    for u in range(4): tile(u)
    a(f"v_add_u32 v{vAK}, {2*REC}, v{vAK}"); a(f"v_add_u32 v{vAK1}, {2*REC}, v{vAK1}"); a(f"v_add_u32 v{vAV}, {2*REC}, v{vAV}")
    a(f"s_sub_u32 s{sCnt}, s{sCnt}, 1"); a(f"s_cmp_lg_u32 s{sCnt}, 0"); a(f"s_cbranch_scc1 {L}_loop")
    a(f"s_add_u32 s{sSeg}, s{sSeg}, 1")
    a(f"s_cmp_eq_u32 s{sSeg}, 2"); a(f"s_cbranch_scc1 {L}_hook1")
    a(f"s_cmp_eq_u32 s{sSeg}, 3"); a(f"s_cbranch_scc1 {L}_hook2")
    a(f"s_cmp_eq_u32 s{sSeg}, 1"); a(f"s_cbranch_scc0 {L}_loopdone")
    a("s_barrier")
    a(f"s_mov_b32 s{sCnt}, {BA1-2}"); a(f"s_branch {L}_loop")
    a(f"{L}_hook1:")
    st(6)
    a("s_waitcnt vmcnt(0)"); a("s_barrier")
    st(7)
    a(f"s_cmp_eq_u32 s{sW}, 7"); a(f"s_cbranch_scc0 {L}_h1x")
    for stp in (8,4,2,1):
        for p in range(stp): a(f"v_add_f32 v{KP+p}, v{KP+p}, v{KP+p+stp}")
    a(f"s_mov_b32 s{sT2}, {KVS}")
    a(f"buffer_store_dword v{KP}, v{T+15}, s[{SRD}:{SRD+3}], s{sT2} offen sc0 sc1")
    a(f"s_mov_b32 s{SDBG}, s6"); a(f"s_and_b32 s{SDBG+1}, s7, 0xffff"); a(f"s_mov_b32 s{SDBG+2}, 256"); a(f"s_mov_b32 s{SDBG+3}, 0x20000")
    a(f"v_mov_b32 v{T+10}, 1"); a(f"v_mov_b32 v{T+11}, {OOB}"); a(f"s_lshl_b32 s{sT2}, s{sJ}, 5"); a(f"v_mov_b32 v{T+12}, s{sT2}")
    a(f"v_cmp_eq_u32 vcc, 0, v0"); a("s_nop 1"); a(f"v_cndmask_b32 v{T+11}, v{T+11}, v{T+12}, vcc")
    a("s_waitcnt vmcnt(0)")
    a(f"buffer_atomic_add v{T+10}, v{T+11}, s[{SDBG}:{SDBG+3}], 0 offen sc1")
    a(f"{L}_h1x:")
    a(f"s_mov_b32 s{sCnt}, s{sN2}"); a(f"s_branch {L}_loop")
    a(f"{L}_hook2:")
    st(8)
    a(f"s_cmp_eq_u32 s{sKH}, 0"); a(f"s_cbranch_scc1 {L}_h2a")
    a("s_setprio 0")
    a(f"{L}_h2a:")
    U, U2, BQ, AK, D = 208, 218, 228, 234, 240
    a(f"s_mov_b32 s{SDBG}, s6"); a(f"s_and_b32 s{SDBG+1}, s7, 0xffff"); a(f"s_mov_b32 s{SDBG+2}, 256"); a(f"s_mov_b32 s{SDBG+3}, 0x20000")
    a(f"s_lshl_b32 s{sT2}, s{sJ}, 5"); a(f"v_mov_b32 v{T+10}, 0"); a(f"s_mov_b32 s{sCnt}, 0")
    def kv_addr():
        a(f"v_mul_u32_u24 v{T+12}, 19, v{vHH}"); a(f"v_add_u32 v{T+12}, v{T+12}, v{vN}"); a(f"v_lshlrev_b32 v{T+12}, 4, v{T+12}")
        a(f"v_mov_b32 v{T+13}, {OOB}"); a(f"v_cmp_gt_u32 vcc, 19, v{vN}"); a(f"v_lshlrev_b32 v{T+14}, 3, v{vN}"); a("s_nop 0")
        a(f"v_cndmask_b32 v{T+12}, v{T+13}, v{T+12}, vcc"); a(f"v_cmp_gt_u32 vcc, 19, v0"); a("s_nop 1")
        a(f"v_cndmask_b32 v{T+14}, v{T+13}, v{T+14}, vcc")
    kv_addr()
    a(f"{L}_poll:")
    a(f"buffer_load_dword v{T+11}, v{T+10}, s[{SDBG}:{SDBG+3}], s{sT2} offen sc0 sc1")
    a("s_waitcnt vmcnt(0)")
    a(f"v_readfirstlane_b32 s{sT3}, v{T+11}")
    a("s_nop 3")
    a(f"s_cmp_ge_u32 s{sT3}, 32"); a(f"s_cbranch_scc1 {L}_ready")
    a(f"s_add_u32 s{sCnt}, s{sCnt}, 1"); a(f"s_cmp_lt_u32 s{sCnt}, 0x4000"); a(f"s_cbranch_scc0 {L}_slowkv")
    a("s_sleep 8"); a(f"s_branch {L}_poll")
    a(f"{L}_slowkv:")
    a(f"s_mul_i32 s{sT2}, s{sHead}, {16*1408}"); a(f"s_add_u32 s{sT2}, s{sT2}, {KVP}")
    for r in range(10): a(f"v_mov_b32 v{KP+r}, 0")
    a(f"s_mov_b32 s{sCnt}, 16")
    a(f"{L}_slowl:")
    a(f"buffer_load_dwordx4 v[{U}:{U+3}], v{T+12}, s[{SRD}:{SRD+3}], s{sT2} offen")
    a(f"buffer_load_dwordx4 v[{U+4}:{U+7}], v{T+12}, s[{SRD}:{SRD+3}], s{sT2} offen offset:608")
    a(f"buffer_load_dwordx2 v[{U+8}:{U+9}], v{T+14}, s[{SRD}:{SRD+3}], s{sT2} offen offset:1216")
    a("s_waitcnt vmcnt(0)")
    for r in range(10): a(f"v_add_f32 v{KP+r}, v{KP+r}, v{U+r}")
    a(f"s_add_u32 s{sT2}, s{sT2}, 1408"); a(f"s_sub_u32 s{sCnt}, s{sCnt}, 1"); a(f"s_cmp_lg_u32 s{sCnt}, 0"); a(f"s_cbranch_scc1 {L}_slowl")
    a(f"s_branch {L}_havekv")
    a(f"{L}_ready:")
    a(f"s_mul_i32 s{sT2}, s{sHead}, 1408"); a(f"s_add_u32 s{sT2}, s{sT2}, {KVS}")
    a(f"buffer_load_dwordx4 v[{KP}:{KP+3}], v{T+12}, s[{SRD}:{SRD+3}], s{sT2} offen sc0 sc1")
    a(f"buffer_load_dwordx4 v[{KP+4}:{KP+7}], v{T+12}, s[{SRD}:{SRD+3}], s{sT2} offen offset:608 sc0 sc1")
    a(f"buffer_load_dwordx2 v[{KP+8}:{KP+9}], v{T+14}, s[{SRD}:{SRD+3}], s{sT2} offen offset:1216 sc0 sc1")
    a(f"{L}_havekv:")
    for r in range(5):
        a(f"v_lshlrev_b32 v{U+2*r}, 16, v{QB+r}"); a(f"v_and_b32 v{U+2*r+1}, 0xffff0000, v{QB+r}")
    a(f"v_mov_b32 v{T+8}, 0x3fb8aa3b"); a(f"v_mov_b32 v{T+9}, 0x358637bd")
    for r in range(10): a(f"v_mul_f32 v{U2+r}, v{U+r}, v{T+8}")
    for r in range(10): a(f"v_exp_f32 v{U2+r}, v{U2+r} clamp")
    for r in range(10): a(f"v_max_f32 v{U+r}, 0, v{U+r}")
    for r in range(10): a(f"v_add_f32 v{U2+r}, v{U2+r}, v{T+9}")
    for r in range(10): a(f"v_add_f32 v{U+r}, v{U+r}, v{U2+r}")
    for r in range(5): a(f"v_cvt_pk_bf16_f32 v{BQ+r}, v{U+2*r}, v{U+2*r+1}")
    a(f"v_cmp_eq_u32 vcc, 0, v{vHH}"); a(f"v_mov_b32 v{BQ+5}, 0")
    a("s_nop 0"); a(f"v_cndmask_b32 v{BQ+4}, 0, v{BQ+4}, vcc")
    a("s_waitcnt vmcnt(0)")
    for r in range(0,10,2): a(f"v_cvt_pk_bf16_f32 v{AK+r//2}, v{KP+r}, v{KP+r+1}")
    a(f"v_mov_b32 v{AK+5}, 0")
    a(f"v_sub_f32 v{T+13}, 1.0, v{vG}")
    a("s_nop 0")
    a(f"v_mfma_f32_32x32x16_bf16 v[{D}:{D+15}], v[{AK}:{AK+3}], v[{BQ}:{BQ+3}], 0")
    a(f"v_mfma_f32_32x32x8bf16_1k v[{D}:{D+15}], v[{AK+4}:{AK+5}], v[{BQ+4}:{BQ+5}], v[{D}:{D+15}]")
    a(f"s_add_u32 s{sT2}, s{sOB}, {64*72*512}")
    a("s_nop 7"); a("s_nop 1")
    def normalize(Ob, scale_reg, eps):
        a(f"v_mov_b32 v{T+12}, v{Ob+10}"); a(f"v_mov_b32 v{T+11}, v{Ob+10}"); a("s_nop 1")
        a(f"v_permlane32_swap_b32 v{T+12}, v{T+11}"); a("s_nop 1")
        if eps: a(f"v_add_f32 v{T+12}, 0x358637bd, v{T+12}")
        a(f"v_rcp_f32 v{T+12}, v{T+12}"); a("s_nop 0")
        a(f"v_mul_f32 v{T+12}, v{T+12}, v{scale_reg}")
        for r in range(10): a(f"v_mul_f32 v{Ob+r}, v{Ob+r}, v{T+12}")
        for r in range(0,10,2): a(f"v_cvt_pk_bf16_f32 v{Ob+r//2}, v{Ob+r}, v{Ob+r+1}")
    def out_store(Ob, sbase):
        a("s_nop 0")
        a(f"v_permlane32_swap_b32 v{Ob}, v{Ob+2}"); a(f"v_permlane32_swap_b32 v{Ob+1}, v{Ob+3}")
        a(f"buffer_store_dword v{Ob+4}, v{vOA+1}, s[{SRD}:{SRD+3}], s{sbase} offen")
        a(f"buffer_store_dwordx4 v[{Ob}:{Ob+3}], v{vOA}, s[{SRD}:{SRD+3}], s{sbase} offen")
    normalize(D, T+13, True)
    out_store(D, sT2)
    a(f"s_cmp_eq_u32 s{sKH}, 0"); a(f"s_cbranch_scc0 {L}_nopf")
    a(f"s_lshr_b32 s{sT2}, s2, 3"); a(f"s_mul_i32 s{sT2}, s{sT2}, 20736"); a(f"s_lshl_b32 s{sT3}, s{sHL}, 13"); a(f"s_add_u32 s{sT2}, s{sT2}, s{sT3}")
    a(f"v_lshlrev_b32 v{T+10}, 7, v0")
    for lo in (44, 46):
        a(f"s_mov_b32 s{SWO}, s{lo}"); a(f"s_and_b32 s{SWO+1}, s{lo+1}, 0xffff"); a(f"s_mov_b32 s{SWO+2}, {576*1152}"); a(f"s_mov_b32 s{SWO+3}, 0x20000")
        a(f"buffer_load_dword v{T+11}, v{T+10}, s[{SWO}:{SWO+3}], s{sT2} offen")
    a(f"{L}_nopf:")
    a(f"s_mov_b32 s{sCnt}, s{sN3}"); a(f"s_branch {L}_loop")
    a(f"{L}_loopdone:")
    st(9)
    a("s_nop 1")
    a(f"v_smfmac_f32_32x32x32_bf16 v[{O[1]}:{O[1]+15}], v[{V1(1)}:{V1(1)+3}], v[{S[3]+8}:{S[3]+15}], v{vIdx}")
    a("s_waitcnt lgkmcnt(0)")
    def slot(sreg, dst):
        a(f"s_and_b32 s{sT0}, s{sreg}, 3"); a(f"s_mul_i32 s{sT0}, s{sT0}, 3072"); a(f"s_cmp_ge_u32 s{sreg}, 4")
        a(f"s_mov_b32 s{sT1}, {STB}"); a(f"s_cmov_b32 s{sT1}, {32*REC}"); a(f"s_add_u32 s{sT0}, s{sT0}, s{sT1}")
        a(f"v_add_u32 v{dst}, s{sT0}, v{vLane16}")
    slot(sW, T+4)
    a(f"s_xor_b32 s{sT3}, s{sW}, 4"); slot(sT3, T+5)
    a("s_nop 3")
    a(f"v_min_f32 v{T+6}, v{O[0]+10}, v{O[1]+10}"); a(f"v_mov_b32 v{T+7}, 0x21800000")
    a(f"v_cmp_nge_f32 vcc, v{T+6}, v{T+7}"); a("s_nop 3")
    a(f"s_and_b32 s{sT2}, vcc_lo, vcc_lo"); a(f"s_cbranch_scc0 {L}_done")
    G = S[0]
    a(f"s_mul_i32 s{sT2}, s{sKH}, {32*REC}"); a(f"s_add_u32 s{sT2}, s{sT2}, {32*REC}")
    a(f"v_subrev_u32 v{vAK}, s{sT2}, v{vAK}"); a(f"v_subrev_u32 v{vAK1}, s{sT2}, v{vAK1}"); a(f"v_subrev_u32 v{vAV}, s{sT2}, v{vAV}")
    a(f"v_mov_b32 v{T+8}, 0xff800000"); a(f"v_mov_b32 v{T+9}, 0xff800000")
    a(f"v_mov_b32 v{QA[0]+5}, 0"); a(f"v_mov_b32 v{QA[1]+5}, 0"); a(f"v_mov_b32 v{G+5}, 0x3f80")
    def blk_off():
        a(f"s_lshr_b32 s{sT0}, s{sCnt}, 4"); a(f"s_lshl_b32 s{sT1}, s{sKH}, 1"); a(f"s_add_u32 s{sT0}, s{sT0}, s{sT1}"); a(f"s_add_u32 s{sT0}, s{sT0}, s{sRot}")
        a(f"s_and_b32 s{sT0}, s{sT0}, 3"); a(f"s_mul_i32 s{sT0}, s{sT0}, {QB4}"); a(f"s_and_b32 s{sT1}, s{sCnt}, 15"); a(f"s_mul_i32 s{sT1}, s{sT1}, {REC}")
        a(f"s_add_u32 s{sT0}, s{sT0}, s{sT1}")
    a(f"s_mov_b32 s{sCnt}, 0")
    a(f"{L}_fb:")
    blk_off()
    a(f"buffer_load_dwordx4 v[{G}:{G+3}], v{vAK}, s[{SRDK}:{SRDK+3}], s{sT0} offen"); a(f"buffer_load_dword v{G+4}, v{vAK1}, s[{SRDK}:{SRDK+3}], s{sT0} offen")
    a("s_waitcnt vmcnt(0)")
    for t in range(2):
        a(f"v_mfma_f32_32x32x16_bf16 v[{S[1+t]}:{S[1+t]+15}], v[{G}:{G+3}], v[{QA[t]}:{QA[t]+3}], 0")
        a(f"v_mfma_f32_32x32x8bf16_1k v[{S[1+t]}:{S[1+t]+15}], v[{G+4}:{G+5}], v[{QA[t]+4}:{QA[t]+5}], v[{S[1+t]}:{S[1+t]+15}]")
    a("s_nop 7"); a("s_nop 7")
    for t in range(2):
        for r in range(0,16,2): a(f"v_max3_f32 v{T+8+t}, v{S[1+t]+r}, v{S[1+t]+r+1}, v{T+8+t}")
    a(f"s_add_u32 s{sCnt}, s{sCnt}, 1"); a(f"s_cmp_lt_u32 s{sCnt}, 32"); a(f"s_cbranch_scc1 {L}_fb")
    for t in range(2):
        a(f"v_mov_b32 v{T+7}, v{T+8+t}"); a("s_nop 1"); a(f"v_permlane32_swap_b32 v{T+8+t}, v{T+7}"); a("s_nop 1")
        a(f"v_max_f32 v{T+6}, v{T+8+t}, v{T+7}"); a(f"v_sub_f32 v{T+6}, 0, v{T+6}")
        a(f"v_cvt_pk_bf16_f32 v{T+7}, v{T+6}, 0"); a(f"v_lshlrev_b32 v{vMM[t]}, 16, v{T+7}")
        a(f"v_cmp_eq_u32 vcc, 0, v{vHH}"); a("s_nop 1"); a(f"v_cndmask_b32 v{QA[t]+5}, 0, v{T+7}, vcc")
    for t in range(2):
        for r in range(16): a(f"v_mov_b32 v{O[t]+r}, 0")
    a(f"s_mov_b32 s{sCnt}, 0")
    a(f"{L}_fb2:")
    blk_off()
    a(f"buffer_load_dwordx4 v[{G}:{G+3}], v{vAK}, s[{SRDK}:{SRDK+3}], s{sT0} offen"); a(f"buffer_load_dword v{G+4}, v{vAK1}, s[{SRDK}:{SRDK+3}], s{sT0} offen")
    a(f"buffer_load_dwordx4 v[{G+6}:{G+9}], v{vAV}, s[{SRDK}:{SRDK+3}], s{sT0} offen"); a(f"buffer_load_dwordx4 v[{G+10}:{G+13}], v{vAV}, s[{SRDK}:{SRDK+3}], s{sT0} offen offset:608")
    a("s_waitcnt vmcnt(0)")
    for t in range(2):
        a(f"v_mfma_f32_32x32x16_bf16 v[{S[1+t]}:{S[1+t]+15}], v[{G}:{G+3}], v[{QA[t]}:{QA[t]+3}], 0")
        a(f"v_mfma_f32_32x32x8bf16_1k v[{S[1+t]}:{S[1+t]+15}], v[{G+4}:{G+5}], v[{QA[t]+4}:{QA[t]+5}], v[{S[1+t]}:{S[1+t]+15}]")
    a("s_nop 7"); a("s_nop 7")
    for t in range(2):
        for r in range(16): a(f"v_exp_f32 v{S[1+t]+r}, v{S[1+t]+r}")
    a("s_nop 1")
    for t in range(2):
        a(f"v_smfmac_f32_32x32x32_bf16 v[{O[t]}:{O[t]+15}], v[{G+6}:{G+9}], v[{S[1+t]}:{S[1+t]+7}], v{vIdx}")
        a(f"v_smfmac_f32_32x32x32_bf16 v[{O[t]}:{O[t]+15}], v[{G+10}:{G+13}], v[{S[1+t]+8}:{S[1+t]+15}], v{vIdx}")
    a("s_nop 7"); a("s_nop 7")
    a(f"s_add_u32 s{sCnt}, s{sCnt}, 1"); a(f"s_cmp_lt_u32 s{sCnt}, 32"); a(f"s_cbranch_scc1 {L}_fb2")
    a(f"{L}_done:")
    a(f"v_mov_b32 v{O[0]+11}, v{vMM[0]}"); a(f"v_mov_b32 v{O[1]+11}, v{vMM[1]}")
    st(10)
    a(f"s_cmp_eq_u32 s{sKH}, 0"); a(f"s_cbranch_scc1 {L}_kh0")
    for c in range(3): a(f"ds_write_b128 v{T+4}, v[{O[0]+4*c}:{O[0]+4*c+3}] offset:{1024*c}")
    for r in range(12): a(f"v_mov_b32 v{O[0]+r}, v{O[1]+r}")
    a(f"s_branch {L}_sent")
    a(f"{L}_kh0:")
    for c in range(3): a(f"ds_write_b128 v{T+4}, v[{O[1]+4*c}:{O[1]+4*c+3}] offset:{1024*c}")
    a(f"{L}_sent:")
    a("s_waitcnt lgkmcnt(0)"); a("s_barrier")
    st(11)
    P = O[1]
    for c in range(3): a(f"ds_read_b128 v[{P+4*c}:{P+4*c+3}], v{T+5} offset:{1024*c}")
    a("s_waitcnt lgkmcnt(0)")
    if "tail" in EXP: st(1)
    a(f"v_min_f32 v{T+8}, v{O[0]+11}, v{P+11}")
    a(f"v_sub_f32 v{T+9}, v{T+8}, v{O[0]+11}"); a(f"v_sub_f32 v{T+10}, v{T+8}, v{P+11}")
    a(f"v_exp_f32 v{T+9}, v{T+9}"); a(f"v_exp_f32 v{T+10}, v{T+10}"); a("s_nop 0")
    for r in range(11): a(f"v_mul_f32 v{O[0]+r}, v{O[0]+r}, v{T+9}")
    for r in range(11): a(f"v_fmac_f32 v{O[0]+r}, v{P+r}, v{T+10}")
    if "tail" in EXP: st(2)
    normalize(O[0], vG, False)
    if "tail" in EXP: st(3)
    out_store(O[0], sOB)
    if "tail" in EXP: st(4)
    a(f"{L}_fin:")
    if stamp:
        st(12)
        a("s_memrealtime s[94:95]"); a("s_mov_b64 exec, -1"); a("s_waitcnt lgkmcnt(0)")
        a(f"s_lshl_b32 s{sT2}, s2, 3"); a(f"s_add_u32 s{sT2}, s{sT2}, s{sW}"); a(f"s_lshl_b32 s{sT2}, s{sT2}, 6"); a(f"s_add_u32 s{sT2}, s{sT2}, 0xF00000")
        a(f"v_mov_b32 v1, 0")
        for i in range(nst[0]):
            a(f"s_sub_u32 s{sT3}, s{64+2*i}, s64"); a(f"v_mov_b32 v2, s{sT3}")
            a(f"buffer_store_dword v2, v1, s[{SRD}:{SRD+3}], s{sT2} offen offset:{4*i}")
        a(f"s_sub_u32 s{sT3}, s94, s92"); a(f"v_mov_b32 v2, s{sT3}")
        a(f"buffer_store_dword v2, v1, s[{SRD}:{SRD+3}], s{sT2} offen offset:60")
        a(f"v_mov_b32 v2, s92")
        a(f"buffer_store_dword v2, v1, s[{SRD}:{SRD+3}], s{sT2} offen offset:56")
    a(f"{L}_end:")
    return kernel_header(name) + a.text() + kernel_footer(name, NV)
```

```python
from asmlib import *
import os
OS = 16384
WB = 65536
WS_ = 18432
LDS = WB + 4*WS_
OOB = 0x7ff00000
def gen_k3(name="outp_kernel", stamp=False):
    a = Asm(); L = name
    nst = [0]
    def st(i):
        if stamp:
            nst[0] = max(nst[0], i+1)
            a(f"s_memtime s[{64+2*i}:{65+2*i}]")
    sR, sJ, sW, sB, sC0, sCA = 12, 13, 14, 15, 16, 17
    SO, SWA, SWB, SOUT = 20, 24, 28, 32
    sB1024, sOo, sWo = 36, 37, 38
    sT0, sT1, sT2, sT3, sT4 = 42, 43, 44, 45, 46
    vN, vHH = 1, 2
    OFr = [8, 12, 16]
    WF = [20, 32, 44]
    ACC = 56
    aO = 104; aW = 105
    aW2 = 106
    vOo = 3; vWo = 104
    vT = 112
    NV = 128
    a("s_cmp_ge_u32 s2, 256"); a(f"s_cbranch_scc1 {L}_end")
    a("s_load_dwordx2 s[4:5], s[0:1], 32")
    a("s_load_dwordx2 s[6:7], s[0:1], 56")
    a("s_load_dwordx2 s[8:9], s[0:1], 72")
    a("s_load_dwordx2 s[10:11], s[0:1], 88")
    st(0)
    if stamp: a("s_memrealtime s[92:93]")
    a(f"s_and_b32 s{sT0}, s2, 7"); a(f"s_lshr_b32 s{sT1}, s2, 3"); a(f"s_and_b32 s{sT2}, s{sT1}, 3"); a(f"s_lshl_b32 s{sT2}, s{sT2}, 3")
    a(f"s_add_u32 s{sR}, s{sT0}, s{sT2}"); a(f"s_lshr_b32 s{sJ}, s2, 5")
    a(f"s_and_b32 s{sT2}, s{sT1}, 3"); a(f"s_lshl_b32 s{sT2}, s{sT2}, 1"); a(f"s_add_u32 s{sC0}, s{sJ}, s{sT2}")
    a(f"s_cmp_ge_u32 s{sC0}, 9"); a(f"s_cselect_b32 s{sT4}, 9, 0"); a(f"s_sub_u32 s{sC0}, s{sC0}, s{sT4}")
    a(f"v_lshrrev_b32 v{vT}, 6, v0"); a(f"v_and_b32 v0, 63, v0")
    a(f"v_readfirstlane_b32 s{sW}, v{vT}")
    a(f"v_and_b32 v{vN}, 31, v0"); a(f"v_lshrrev_b32 v{vHH}, 5, v0")
    a(f"v_lshlrev_b32 v{vOo}, 4, v0")
    a(f"s_and_b32 s{sB}, s{sW}, 3"); a(f"s_lshl_b32 s{sB1024}, s{sB}, 10")
    a("s_waitcnt lgkmcnt(0)")
    def srd(d, lo, hi, n):
        a(f"s_mov_b32 s{d}, s{lo}"); a(f"s_and_b32 s{d+1}, s{hi}, 0xffff"); a(f"s_mov_b32 s{d+2}, {n}"); a(f"s_mov_b32 s{d+3}, 0x20000")
    srd(SO, 10, 11, WS_USED)
    srd(SOUT, 8, 9, 2048*1152)
    def next_ca():
        a(f"s_add_u32 s{sCA}, s{sCA}, 1"); a(f"s_cmp_eq_u32 s{sCA}, 9"); a(f"s_cselect_b32 s{sCA}, 0, s{sCA}")
    sOb = 39
    a(f"s_lshl_b32 s{sT0}, s{sR}, 1"); a(f"s_mul_i32 s{sT0}, s{sT0}, {36*1024}"); a(f"s_add_u32 s{sOb}, s{sT0}, {OF}"); a(f"s_add_u32 s{sOb}, s{sOb}, s{sB1024}")
    def dma_o(c):
        s = c % 4
        a(f"s_lshl_b32 s{sOo}, s{sCA}, 12"); a(f"s_add_u32 s{sOo}, s{sOo}, s{sOb}")
        for m in range(4):
            p, rt = m >> 1, m & 1
            a(f"s_add_u32 m0, s{sB1024}, {s*OS + m*4096}"); a(f"s_add_u32 s{sT0}, s{sOo}, {(p*64+rt)*36*1024}")
            a(f"buffer_load_dwordx4 v{vOo}, s[{SO}:{SO+3}], s{sT0} offen lds")
    a(f"s_cmp_ge_u32 s{sW}, 4"); a(f"s_cbranch_scc1 {L}_b")
    a(f"s_mov_b32 s{sCA}, s{sC0}")
    dma_o(0)
    a(f"s_lshl_b32 s{sT0}, s{sW}, 12"); a(f"v_add_u32 v{aO}, s{sT0}, v{vOo}")
    a(f"v_lshrrev_b32 v{vT}, 4, v0"); a(f"v_and_b32 v{vT}, 1, v{vT}"); a(f"v_lshlrev_b32 v{vT}, 5, v{vT}")
    a(f"v_lshrrev_b32 v{vT+1}, 2, v0"); a(f"v_and_b32 v{vT+1}, 3, v{vT+1}"); a(f"v_lshlrev_b32 v{vT+2}, 3, v{vHH}"); a(f"v_add_u32 v{vT+1}, v{vT+1}, v{vT+2}")
    a(f"v_mul_u32_u24 v{vT+1}, 144, v{vT+1}"); a(f"v_and_b32 v{vT+2}, 3, v0"); a(f"v_lshlrev_b32 v{vT+2}, 3, v{vT+2}")
    a(f"v_add_u32 v{vT}, v{vT}, v{vT+1}"); a(f"v_add_u32 v{vT}, v{vT}, v{vT+2}")
    a(f"s_lshr_b32 s{sT0}, s{sW}, 1"); a(f"s_mul_i32 s{sT0}, s{sT0}, 9216"); a(f"s_add_u32 s{sT0}, s{sT0}, {WB}")
    a(f"v_add_u32 v{aW}, s{sT0}, v{vT}")
    a(f"v_add_u32 v{aW2}, {3*WS_}, v{aW}")
    for r in range(48): a(f"v_mov_b32 v{ACC+r}, 0")
    def reads(c, ks, st_):
        s = c % 4; out = [f"ds_read_b128 v[{OFr[st_]}:{OFr[st_]+3}], v{aO} offset:{s*OS + ks*1024}"]
        for T in range(3):
            for t in range(2):
                o = (16*ks+4*t)*144 + 64*T
                reg, off = (aW, s*WS_ + o) if s < 3 else (aW2, o)
                out.append(f"ds_read_b64_tr_b16 v[{WF[st_]+4*T+2*t}:{WF[st_]+4*T+2*t+1}], v{reg} offset:{off}")
        return out
    a("s_waitcnt vmcnt(0)"); a("s_barrier"); st(1)
    for x in reads(0,0,0): a(x)
    for x in reads(0,1,1): a(x)
    for s_ in range(36):
        c, ks = divmod(s_, 4); cur = s_ % 3
        if ks == 2:
            a("s_waitcnt lgkmcnt(0)")
            a("s_barrier"); st(2+c)
        elif ks != 3:
            a("s_waitcnt lgkmcnt(7)")
        rd = reads(*divmod(s_+2, 4), (s_+2) % 3) if s_+2 < 36 else []
        sched = [1,3,3]
        for T in range(3):
            for _ in range(sched[T]):
                if rd: a(rd.pop(0))
            d = ACC + 16*T
            a(f"v_mfma_f32_32x32x16_bf16 v[{d}:{d+15}], v[{WF[cur]+4*T}:{WF[cur]+4*T+3}], v[{OFr[cur]}:{OFr[cur]+3}], v[{d}:{d+15}]")
    a("s_nop 7"); a("s_nop 7")
    a(f"s_and_b32 s{sT0}, s{sW}, 1"); a(f"s_mul_i32 s{sT0}, s{sT0}, {36*256}")
    a(f"v_lshlrev_b32 v{vT}, 2, v0"); a(f"v_add_u32 v{vT}, s{sT0}, v{vT}")
    regs = list(range(ACC, ACC+32)) + list(range(ACC+32, ACC+36))
    a(f"s_cmp_ge_u32 s{sW}, 2"); a(f"s_cbranch_scc0 {L}_p0")
    for i, r in enumerate(regs): a(f"ds_write_b32 v{vT}, v{r} offset:{256*i}")
    a("s_waitcnt lgkmcnt(0)"); a("s_barrier")
    a(f"s_branch {L}_sync2")
    a(f"{L}_p0:")
    a("s_barrier")
    for i in range(36): a(f"ds_read_b32 v{8+i}, v{vT} offset:{256*i}")
    a("s_waitcnt lgkmcnt(0)")
    for i, r in enumerate(regs): a(f"v_add_f32 v{r}, v{r}, v{8+i}")
    a(f"s_and_b32 s{sT0}, s{sW}, 1"); a(f"s_mul_i32 s{sT0}, s{sT0}, {32*144}"); a(f"s_add_u32 s{sT0}, s{sT0}, 32768")
    a(f"v_mul_u32_u24 v{vT+1}, 144, v{vN}"); a(f"v_lshlrev_b32 v{vT+2}, 3, v{vHH}"); a(f"v_add_u32 v{vT+1}, v{vT+1}, v{vT+2}"); a(f"v_add_u32 v{vT+1}, s{sT0}, v{vT+1}")
    for T in range(3):
        for q in range(4 if T < 2 else 1):
            d = ACC + 16*T + 4*q
            a(f"v_cvt_pk_bf16_f32 v{d}, v{d}, v{d+1}"); a(f"v_cvt_pk_bf16_f32 v{d+1}, v{d+2}, v{d+3}")
            a(f"ds_write_b64 v{vT+1}, v[{d}:{d+1}] offset:{64*T+16*q}")
    a("s_waitcnt lgkmcnt(0)")
    a(f"{L}_sync2:")
    a("s_barrier")
    a(f"s_branch {L}_out")
    a(f"{L}_b:")
    srd(SWA, 4, 5, 576*1152); srd(SWB, 6, 7, 576*1152)
    def w_off(dst, i_s):
        a(f"s_lshl_b32 s{sT2}, s{i_s}, 6"); a(f"v_add_u32 v{vT+7}, s{sT2}, v0")
        a(f"v_mul_u32_u24 v{vT+8}, 7282, v{vT+7}"); a(f"v_lshrrev_b32 v{vT+8}, 16, v{vT+8}")
        a(f"v_mul_u32_u24 v{vT+9}, 9, v{vT+8}"); a(f"v_sub_u32 v{vT+9}, v{vT+7}, v{vT+9}")
        a(f"v_lshlrev_b32 v{vT+9}, 4, v{vT+9}"); a(f"s_mul_i32 s{sT2}, s{sJ}, 144"); a(f"v_add_u32 v{vT+9}, s{sT2}, v{vT+9}")
        a(f"v_lshrrev_b32 v{vT+10}, 4, v{vT+8}"); a(f"v_mul_u32_u24 v{vT+10}, 18, v{vT+10}"); a(f"v_and_b32 v{vT+11}, 15, v{vT+8}"); a(f"v_add_u32 v{vT+10}, v{vT+10}, v{vT+11}")
        a(f"v_mul_u32_u24 v{vT+10}, 1152, v{vT+10}"); a(f"v_add_u32 v{dst}, v{vT+9}, v{vT+10}")
        a(f"v_lshrrev_b32 v{vT+10}, 1, v{vT+8}"); a(f"v_mul_u32_u24 v{vT+10}, 18, v{vT+10}"); a(f"v_and_b32 v{vT+11}, 1, v{vT+8}"); a(f"v_add_u32 v{vT+10}, v{vT+10}, v{vT+11}")
        a(f"v_add_u32 v{vT+10}, 16, v{vT+10}"); a(f"v_mul_u32_u24 v{vT+10}, 1152, v{vT+10}"); a(f"v_add_u32 v{dst+3}, v{vT+9}, v{vT+10}")
    a(f"s_mov_b32 s{sT3}, s{sB}"); w_off(vWo, sT3)
    a(f"s_add_u32 s{sT3}, s{sB}, 4"); w_off(vWo+1, sT3)
    a(f"s_mov_b32 s{sT3}, 8"); w_off(vWo+2, sT3)
    a(f"s_and_b32 s{sT0}, s{sB}, 1"); a(f"s_cmp_eq_u32 s{sT0}, 0")
    for i in range(3): a(f"s_cselect_b32 s{48+i}, s{SWA+i}, s{SWB+i}")
    a("s_mov_b32 s51, 0x20000")
    s5m = 40
    a(f"s_mul_i32 s{s5m}, s{sT0}, 9216"); a(f"s_add_u32 s{s5m}, s{s5m}, {WB + 8192}")
    nlab = [0]
    def dma_w(c):
        s = c % 4
        nlab[0] += 1; lb = f"{L}_dw{nlab[0]}"
        def body(vo, soff):
            for (srd_, po) in ((SWA, 0), (SWB, 9216)):
                for m in range(2):
                    a(f"s_add_u32 m0, s{sB1024}, {WB + s*WS_ + po + 4096*m}"); a("s_nop 0")
                    a(f"buffer_load_dwordx4 v{vo+m}, s[{srd_}:{srd_+3}], {soff} offen lds")
            a(f"s_add_u32 m0, s{s5m}, {s*WS_}"); a("s_nop 0")
            a(f"buffer_load_dwordx4 v{vo+2}, s[48:51], {soff} offen lds")
        a(f"s_cmp_eq_u32 s{sCA}, 8"); a(f"s_cbranch_scc1 {lb}_t")
        a(f"s_mul_i32 s{sWo}, s{sCA}, {72*1152}")
        body(vWo, f"s{sWo}")
        a(f"s_branch {lb}_e")
        a(f"{lb}_t:")
        body(vWo+3, "0")
        a(f"{lb}_e:")
    a(f"s_mov_b32 s{sCA}, s{sC0}")
    dma_w(0); next_ca()
    dma_o(1); dma_w(1); next_ca()
    a("s_waitcnt vmcnt(9)"); a("s_barrier"); st(1)
    for c in range(2,4):
        dma_o(c); dma_w(c); next_ca()
    waits = {0:18, 1:18, 2:18, 3:18, 4:18, 5:18, 6:9, 7:0}
    for c in range(9):
        if c < 8: a(f"s_waitcnt vmcnt({waits[c]})")
        a("s_barrier"); st(2+c)
        if c+4 <= 8:
            dma_o(c+4); dma_w(c+4); next_ca()
    a("s_barrier")
    a("s_barrier")
    a(f"{L}_out:")
    st(11)
    def out_chunk(base_s_or_const):
        a(f"v_mul_u32_u24 v{vT+8}, 7282, v{vT+7}"); a(f"v_lshrrev_b32 v{vT+8}, 16, v{vT+8}")
        a(f"v_mul_u32_u24 v{vT+9}, 9, v{vT+8}"); a(f"v_sub_u32 v{vT+9}, v{vT+7}, v{vT+9}")
        a(f"v_lshlrev_b32 v{vT+9}, 4, v{vT+9}")
        a(f"v_mul_u32_u24 v{vT+10}, 144, v{vT+8}"); a(f"v_add_u32 v{vT+10}, v{vT+10}, v{vT+9}"); a(f"v_add_u32 v{vT+10}, 32768, v{vT+10}")
        a(f"ds_read_b128 v[8:11], v{vT+10}")
        a(f"v_mul_u32_u24 v{vT+8}, 1152, v{vT+8}"); a(f"v_add_u32 v{vT+9}, v{vT+9}, v{vT+8}")
        a("s_waitcnt lgkmcnt(0)")
        a(f"buffer_store_dwordx4 v[8:11], v{vT+9}, s[{SOUT}:{SOUT+3}], s{sT4} offen")
    a(f"s_mul_i32 s{sT4}, s{sR}, {64*1152}"); a(f"s_mul_i32 s{sT0}, s{sJ}, 144"); a(f"s_add_u32 s{sT4}, s{sT4}, s{sT0}")
    a(f"s_lshl_b32 s{sT0}, s{sW}, 6"); a(f"v_add_u32 v{vT+7}, s{sT0}, v0")
    out_chunk(None)
    a(f"s_cmp_eq_u32 s{sW}, 0"); a(f"s_cbranch_scc0 {L}_fin")
    a(f"v_add_u32 v{vT+7}, 512, v0")
    a("s_nop 1")
    out_chunk(None)
    a(f"{L}_fin:")
    if stamp:
        st(12)
        a("s_memrealtime s[94:95]"); a("s_mov_b64 exec, -1"); a("s_waitcnt lgkmcnt(0)")
        a(f"s_lshl_b32 s{sT2}, s2, 3"); a(f"s_add_u32 s{sT2}, s{sT2}, s{sW}"); a(f"s_lshl_b32 s{sT2}, s{sT2}, 6"); a(f"s_add_u32 s{sT2}, s{sT2}, 0xF80000")
        a(f"v_mov_b32 v1, 0")
        for i in range(nst[0]):
            a(f"s_sub_u32 s{sT3}, s{64+2*i}, s64"); a(f"v_mov_b32 v2, s{sT3}")
            a(f"buffer_store_dword v2, v1, s[{SO}:{SO+3}], s{sT2} offen offset:{4*i}")
        a(f"s_sub_u32 s{sT3}, s94, s92"); a(f"v_mov_b32 v2, s{sT3}")
        a(f"buffer_store_dword v2, v1, s[{SO}:{SO+3}], s{sT2} offen offset:60")
        a(f"v_mov_b32 v2, s92")
        a(f"buffer_store_dword v2, v1, s[{SO}:{SO+3}], s{sT2} offen offset:56")
    a(f"{L}_end:")
    return kernel_header(name) + a.text() + kernel_footer(name, NV)
```
